```python
import torch

def _softmax(x, axis=-1):
    return torch.softmax(x, dim=axis)
def _gelu(x):
    return torch.nn.functional.gelu(x, approximate="tanh")
def _silu(x):
    return torch.nn.functional.silu(x)
def _sigmoid(x):
    return torch.sigmoid(x)
def _layernorm(x, axis=-1, eps=1e-5):
    m = x.mean(dim=axis, keepdim=True)
    v = x.var(dim=axis, keepdim=True, unbiased=False)
    return (x - m) / torch.sqrt(v + eps)
def _scatter_add(tgt, idx, src, axis=0):
    return tgt.clone().index_add_(axis, idx, src)
def _segment_sum(src, seg, n):
    out = torch.zeros((n,) + src.shape[1:], dtype=src.dtype)
    return out.index_add_(0, seg, src)
def _pad(x, pw):
    flat = tuple(v for pair in reversed(pw) for v in pair)
    return torch.nn.functional.pad(x, flat)

kernel_name = 'gated_mix__ssm_conv_s4__ssm_conv_s5__prompt'

def setup_inputs():

    _w = (lambda a: (lambda t: t.to(torch.bfloat16) if t.is_floating_point() else t)(torch.as_tensor(a)))
    def _A_setup():
        B, L, D, N = 1, 2048, 448, 256
        A_re = -(lambda _x: torch.exp(torch.as_tensor(_x)))((lambda *s: torch.randn(*s, dtype=torch.bfloat16) * 3.2)(D, N))
        A_im = torch.pi * (lambda *s: torch.randn(*s, dtype=torch.bfloat16) * 0.05)(D, N)
        B_re = (lambda *s: torch.randn(*s, dtype=torch.bfloat16) * 0.05)(D, N)
        B_im = (lambda *s: torch.randn(*s, dtype=torch.bfloat16) * 0.1)(D, N)
        C_re = (lambda *s: torch.randn(*s, dtype=torch.bfloat16) * 0.1)(D, N)
        C_im = (lambda *s: torch.randn(*s, dtype=torch.bfloat16) * 0.1)(D, N)
        log_dt = (lambda *s: torch.randn(*s, dtype=torch.bfloat16) * 0.05)(D) * 0.5 - 4.0
        Dskip = (lambda *s: torch.randn(*s, dtype=torch.bfloat16) * 0.05)(D)
        return {
            "u": _w((lambda *s: torch.randn(*s, dtype=torch.bfloat16) * 0.05)(B, L, D)),
            "A_re": _w(A_re),
            "A_im": _w(A_im),
            "B_re": _w(B_re),
            "B_im": _w(B_im),
            "C_re": _w(C_re),
            "C_im": _w(C_im),
            "log_dt": _w(log_dt),
            "Dskip": _w(Dskip),
        }
    _A_in = _A_setup()

    def _B_setup():
        B, S, D = 1, 2048, 448
        P = D
        Lambda_re = -0.5 * (lambda _x: torch.exp(torch.as_tensor(_x)))((lambda *s: torch.randn(*s, dtype=torch.bfloat16) * 0.2)(P))
        Lambda_im = (lambda *s: torch.randn(*s, dtype=torch.bfloat16) * 0.4)(P) * 1.0
        B_re = (lambda *s: torch.randn(*s, dtype=torch.bfloat16) * 0.2)(P, D) * (D ** -0.5)
        B_im = (lambda *s: torch.randn(*s, dtype=torch.bfloat16) * 0.2)(P, D) * (D ** -0.5)
        C_re = (lambda *s: torch.randn(*s, dtype=torch.bfloat16) * 0.2)(D, P) * (P ** -0.5)
        C_im = (lambda *s: torch.randn(*s, dtype=torch.bfloat16) * 0.2)(D, P) * (P ** -0.5)
        log_dt = (lambda *s: torch.randn(*s, dtype=torch.bfloat16) * 0.2)(P) * 0.3 - 2.0
        Dskip = (lambda *s: torch.randn(*s, dtype=torch.bfloat16) * 0.05)(D)
        return {
            "x": _w((lambda *s: torch.randn(*s, dtype=torch.bfloat16) * 0.05)(B, S, D)),
            "Lambda_re": _w(Lambda_re),
            "Lambda_im": _w(Lambda_im),
            "B_re": _w(B_re),
            "B_im": _w(B_im),
            "C_re": _w(C_re),
            "C_im": _w(C_im),
            "log_dt": _w(log_dt),
            "Dskip": _w(Dskip),
        }
    _B_in = _B_setup()

    return {
        "A_u": _A_in["u"],
        "A_A_re": _A_in["A_re"],
        "A_A_im": _A_in["A_im"],
        "A_B_re": _A_in["B_re"],
        "A_B_im": _A_in["B_im"],
        "A_C_re": _A_in["C_re"],
        "A_C_im": _A_in["C_im"],
        "A_log_dt": _A_in["log_dt"],
        "A_Dskip": _A_in["Dskip"],
        "B_x": _B_in["x"],
        "B_Lambda_re": _B_in["Lambda_re"],
        "B_Lambda_im": _B_in["Lambda_im"],
        "B_B_re": _B_in["B_re"],
        "B_B_im": _B_in["B_im"],
        "B_C_re": _B_in["C_re"],
        "B_C_im": _B_in["C_im"],
        "B_log_dt": _B_in["log_dt"],
        "B_Dskip": _B_in["Dskip"],
        "gate_w": _w((lambda *s: torch.randn(*s, dtype=torch.bfloat16) * 0.05)(448) * 16.0),
    }

def reference(A_u, A_A_re, A_A_im, A_B_re, A_B_im, A_C_re, A_C_im, A_log_dt, A_Dskip, B_x, B_Lambda_re, B_Lambda_im, B_B_re, B_B_im, B_C_re, B_C_im, B_log_dt, B_Dskip, gate_w):
    def _A_ref(u, A_re, A_im, B_re, B_im, C_re, C_im, log_dt, Dskip):
        Bsz, L, D = u.shape
        dt = torch.exp(log_dt)[:, None]
        A = A_re + 1j * A_im
        Bc = B_re + 1j * B_im
        Cc = C_re + 1j * C_im
        logdA = dt * A
        dB = dt * Bc
        l = (lambda x, dt: x.to(dt))(torch.arange(L), A_re.dtype)
        P = torch.exp(logdA[:, :, None] * l[None, None, :])
        K = torch.einsum("dn,dnl,dn->dl", Cc, P, dB).real
        L2 = 2 * L
        Kp = _pad(K, ((0, 0), (0, L)))
        up = (lambda x, *d: x.permute(*d))(u, 0, 2, 1)
        up = _pad(up, ((0, 0), (0, 0), (0, L)))
        Kf = (lambda x, axes=(-2,-1): torch.fft.rfft2(x.float(), dim=axes))(Kp[:, None, :], axes=(-2, -1))
        Uf = (lambda x, axes=(-2,-1): torch.fft.rfft2(x.float(), dim=axes))(up[:, :, None, :], axes=(-2, -1))
        Yf = Uf * Kf[None, :, :, :]
        y = (lambda x, s, axes=(-2,-1): torch.fft.irfft2(x, s=s, dim=axes).to(torch.bfloat16))(Yf, (1, L2), axes=(-2, -1))[:, :, 0, :L]
        y = (lambda x, *d: x.permute(*d))(y, 0, 2, 1) + u * Dskip[None, None, :]
        return y

    def _B_ref(x, Lambda_re, Lambda_im, B_re, B_im, C_re, C_im, log_dt, Dskip):
        Bsz, L, H = x.shape
        Lam = Lambda_re + 1j * Lambda_im
        Bmat = B_re + 1j * B_im
        Cmat = C_re + 1j * C_im
        dt = torch.exp(log_dt)
        Lam_bar = torch.exp(dt * Lam)
        B_bar = ((Lam_bar - 1.0) / Lam)[:, None] * Bmat
        Bu = torch.einsum("bld,pd->blp", x + 0j, B_bar)
        h = torch.zeros_like(Bu[:, 0, :])
        hs = []
        for t in range(L):
            h = Lam_bar[None, :] * h + Bu[:, t, :]
            hs.append(h)
        hseq = torch.stack(hs, 1)
        y = 2.0 * torch.einsum("blp,dp->bld", hseq, Cmat).real + x * Dskip[None, None, :]
        return y

    x = A_u
    g = _sigmoid((x * gate_w).sum(-1, keepdims=True))
    a = _A_ref(x, A_A_re, A_A_im, A_B_re, A_B_im, A_C_re, A_C_im, A_log_dt, A_Dskip)
    b = _B_ref(x, B_Lambda_re, B_Lambda_im, B_B_re, B_B_im, B_C_re, B_C_im, B_log_dt, B_Dskip)
    return g * a + (1 - g) * b
```

```python
import re
TRANS = ("v_exp_f32", "v_log_f32", "v_rcp_f32", "v_rsq_f32", "v_sqrt_f32", "v_sin_f32", "v_cos_f32")
def regs(op):
    op = op.strip().lstrip("-").replace("abs(", "").replace(")", "").strip("|")
    m = re.fullmatch(r"([vs])(\d+)", op)
    if m: return {(m.group(1), int(m.group(2)))}
    m = re.fullmatch(r"([vs])\[(\d+):(\d+)\]", op)
    if m: return {(m.group(1), i) for i in range(int(m.group(2)), int(m.group(3)) + 1)}
    if op == "vcc": return {("s", "vcc")}
    if op == "exec": return {("s", "exec")}
    if op == "m0": return {("s", "m0")}
    return set()
class Ins:
    def __init__(self, text):
        self.text = text
        t = text.split(";")[0].strip()
        self.op = t.split()[0]
        rest = t[len(self.op):].strip()
        parts = [p.strip() for p in rest.split(",")] if rest else []
        ops = []
        for p in parts:
            ops.append(p.split()[0] if p.split() else "")
        self.ops = ops
        op = self.op
        self.mfma = op.startswith("v_mfma")
        self.valu = op.startswith("v_") and not self.mfma
        self.trans = op in TRANS
        self.salu = op.startswith("s_")
        self.ds = op.startswith("ds_")
        self.vmem = op.startswith(("global_", "buffer_"))
        self.dpp = any(k in t for k in ("row_ror", "row_shr", "row_shl", "quad_perm", "wave_shr", "row_bcast", "row_mirror", "row_half_mirror", "row_newbcast"))
        self.w = set(); self.r = set(); self.srcc = set(); self.ab = set()
        R = [regs(o) for o in ops]
        if self.mfma:
            self.w = R[0]; self.ab = R[1] | R[2]; self.srcc = R[3]; self.r = self.ab | self.srcc
        elif self.valu:
            self.w = set(R[0]);
            k = 1
            if "_co_" in op: self.w |= R[1]; k = 2
            for x in R[k:]: self.r |= x
            if op.startswith(("v_fmac", "v_permlane")) or self.dpp: self.r |= R[0]
            if op.startswith("v_permlane"): self.w |= R[1]
            if op.startswith("v_cndmask") and len(ops) == 3: self.r |= {("s", "vcc")}
        elif self.ds or self.vmem:
            isload = (("read" in op or "load" in op or "_rtn" in op or "permute" in op or "swizzle" in op) and "lds" not in op.replace("ds_", "", 1) and not t.endswith(" lds") and " lds " not in t)
            if isload:
                self.w = R[0]
                for x in R[1:]: self.r |= x
                if "d16" in op: self.r |= R[0]
            else:
                for x in R: self.r |= x
            if "addtid" in op or "load_lds" in op or t.endswith(" lds") or " lds " in t: self.r |= {("s", "m0")}
        elif self.salu:
            if op.startswith(("s_cmp", "s_cbranch", "s_branch", "s_waitcnt", "s_nop", "s_barrier", "s_endpgm", "s_sleep", "s_setprio")):
                for x in R: self.r |= x
            else:
                if R: self.w = set(R[0])
                for x in R[1:]: self.r |= x
                if "saveexec" in op: self.w |= {("s", "exec")}
        self.widestore = self.vmem and ("store_dwordx4" in op or "store_dwordx3" in op)
        self.passes = 8 if "32x32" in op else 4
    def states(self):
        if self.op == "s_nop": return int(self.ops[0]) + 1
        return 1
def need(p, c):
    n = 0
    vw = {x for x in p.w if x[0] == "v"}; sw = {x for x in p.w if x[0] == "s"}
    if p.valu:
        if c.mfma and vw & c.r: n = max(n, 2)
        if c.dpp and vw & c.r: n = max(n, 2)
        if c.op.startswith("v_permlane") and vw & c.r: n = max(n, 2)
        if c.op.startswith(("v_readfirstlane", "v_readlane")) and vw & c.r: n = max(n, 1)
        if p.trans and c.valu and not c.trans and vw & c.r: n = max(n, 1)
        if p.trans and (c.ds or c.vmem) and vw & c.r: n = max(n, 1)
        if c.valu and sw & c.r: n = max(n, 4 if c.op.startswith(("v_readlane", "v_writelane")) else 2)
        if c.vmem and sw & c.r: n = max(n, 5)
        if ("op_sel" in p.text and not p.op.startswith("v_pk")) and c.valu and vw & (c.r | c.w): n = max(n, 1)
    if p.mfma:
        big = 12 if p.passes == 8 else 8
        if c.mfma:
            if vw & c.ab: n = max(n, big)
            if vw & c.srcc and not (c.srcc == vw and c.passes == p.passes): n = max(n, big - 2)
        elif (c.valu or c.ds or c.vmem) and vw & (c.r | c.w): n = max(n, big)
        if c.valu and p.srcc & c.w: n = max(n, 7 if p.passes == 8 else 3)
    if p.salu and ("s", "m0") in p.w and (c.ds or c.vmem) and ("s", "m0") in c.r: n = max(n, 1)
    if p.widestore and (c.valu or c.mfma) and {x for x in p.r if x[0] == "v"} & c.w: n = max(n, 2)
    if p.widestore and (c.ds or c.vmem) and {x for x in p.r if x[0] == "v"} & c.w: n = max(n, 1)
    return n
class Asm:
    def __init__(self):
        self.lines = []; self.hist = []; self.nops = 0
    def raw(self, s): self.lines.append(s)
    def label(self, name):
        self.lines.append(name + ":")
    def flush(self, n=12):
        worst = 0; dist = 0
        for p in reversed(self.hist):
            lim = (12 if p.passes == 8 else 8) if p.mfma else (5 if p.valu and any(x[0] == "s" for x in p.w) else 2 if (p.valu or p.widestore) else 1 if ("s", "m0") in p.w else 0)
            worst = max(worst, lim - dist); dist += p.states()
            if dist > 12: break
        if worst > 0: self("s_nop %d" % (worst - 1))
    def __call__(self, text):
        for ln in text.strip().split("\n"):
            ln = ln.strip()
            if not ln or ln.startswith(";"):
                if ln: self.lines.append("    " + ln)
                continue
            if ln.endswith(":"): self.label(ln[:-1]); continue
            c = Ins(ln)
            if c.op.startswith(("s_cbranch", "s_branch")): self.flush()
            dist = 0; pad = 0
            for p in reversed(self.hist):
                pad = max(pad, need(p, c) - dist); dist += p.states()
                if dist > 14: break
            if pad > 0:
                nop = Ins("s_nop %d" % (pad - 1)); self.hist.append(nop); self.lines.append("    " + nop.text); self.nops += 1
            self.hist.append(c); self.lines.append("    " + ln)
    def text(self): return "\n".join(self.lines) + "\n"
```

```python
import sys
from asmlib import Asm
PROF = "prof" in sys.argv
NAME = "gated_mix__ssm_conv_s4__ssm_conv_s5__prompt"
A = Asm()
G_OFF, G_STR, G_ROW = 57344, 6048, 288
U_OFF, U_CP = 114688, 4288
K_OFF, K_STR = 131840, 4672
HS_OFF, HS_STR = 141184, 2304
CNT = 159616
PART = 114688
WS_H, WS_Y, WS_G, WS_P = 0x20000, 0x3A0000, 0x560000, 0x600000
LOG2E, INV2PI = 0x3fb8aa3b, 0x3e22f983
def fl(x):
    import struct; return "0x%08x" % struct.unpack("<I", struct.pack("<f", x))[0]
def P(r): return "v[%d:%d]" % (r, r + 1)
def Q(r): return "v[%d:%d]" % (r, r + 3)
u_, Are, Aim, Bre, Bim, Cre, Cim, Aldt, ADs, Lre, Lim, BBre, BBim, BCre, BCim, Bldt, BDs, gw, out_, dbg, ws = [
    "s[%d:%d]" % (i, i + 1) for i in (16, 18, 20, 22, 24, 26, 28, 30, 32, 36, 38, 40, 42, 44, 46, 48, 50, 52, 54, 56, 58)]
nstamp = [0]
def stamp():
    if PROF:
        A("s_memtime s[%d:%d]" % (64 + 2 * nstamp[0], 65 + 2 * nstamp[0])); nstamp[0] += 1
def cmul(d, a, b):
    A(f"v_pk_mul_f32 {P(d)}, {P(a)}, {P(b)} op_sel:[0,0] op_sel_hi:[0,1]")
    A(f"v_pk_fma_f32 {P(d)}, {P(a)}, {P(b)}, {P(d)} op_sel:[1,1,0] op_sel_hi:[1,0,1] neg_lo:[1,0,0]")
def cfma(d, a, b, c, t):
    A(f"v_pk_fma_f32 {P(t)}, {P(a)}, {P(b)}, {P(c)} op_sel:[0,0,0] op_sel_hi:[0,1,1]")
    A(f"v_pk_fma_f32 {P(d)}, {P(a)}, {P(b)}, {P(t)} op_sel:[1,1,0] op_sel_hi:[1,0,1] neg_lo:[1,0,0]")
def cexp(d, ar, rev, k, t):
    A(f"""v_mul_f32 v{t}, {k}, v{ar}
    v_mul_f32 v{t+1}, {k}, v{rev}
    v_exp_f32 v{t}, v{t}
    v_rndne_f32 v{t+2}, v{t+1}
    v_sub_f32 v{t+1}, v{t+1}, v{t+2}
    v_cos_f32 v{d}, v{t+1}
    v_sin_f32 v{d+1}, v{t+1}
    v_pk_mul_f32 {P(d)}, {P(d)}, {P(t)} op_sel:[0,0] op_sel_hi:[1,0]""")
def dt_from_log(d, src):
    A(f"""v_mul_f32 v{d}, {LOG2E:#x}, v{src}
    v_exp_f32 v{d}, v{d}
    v_cvt_pk_bf16_f32 v{d}, v{d}, v{d}
    v_lshlrev_b32 v{d}, 16, v{d}""")
npoll = [0]
def poll(va, vt, tmp):
    n = npoll[0]; npoll[0] += 1
    A(f"""s_cmp_lg_u32 s3, 0
    s_cbranch_scc1 LPD{n}
    s_mov_b32 s7, 0
LPL{n}:
    global_load_ubyte v{tmp}, v{va}, {dbg} sc1
    s_waitcnt vmcnt(0)
    v_cmp_gt_u32 vcc, v{vt}, v{tmp}
    s_add_u32 s7, s7, 1
    s_cmp_gt_u32 s7, 0x40000
    s_cbranch_scc1 LPD{n}
    s_cbranch_vccz LPD{n}
    s_sleep 1
    s_branch LPL{n}
LPD{n}:""")
nsig = [0]
def flag_store(val, t):
    A(f"""v_mov_b32 v{t}, s4
    v_mov_b32 v{t+1}, {val}
    s_mov_b64 exec, 1
    global_store_byte v{t}, v{t+1}, {dbg} sc1
    s_mov_b64 exec, -1""")
def signal_last(cnt_off, val, t):
    n = nsig[0]; nsig[0] += 1
    A(f"""v_mov_b32 v{t}, {CNT + cnt_off}
    v_mov_b32 v{t+1}, 1
    s_mov_b64 exec, 1
    ds_add_rtn_u32 v{t+1}, v{t}, v{t+1}
    s_mov_b64 exec, -1
    s_waitcnt lgkmcnt(0)
    v_readfirstlane_b32 s7, v{t+1}
    s_cmp_lg_u32 s7, 7
    s_cbranch_scc1 LSG{n}""")
    flag_store(val, t)
    A(f"LSG{n}:")

A(f"""s_cmp_ge_u32 s2, 256
s_cbranch_scc1 LEND
s_load_dwordx16 s[16:31], s[0:1], 0
s_load_dwordx16 s[32:47], s[0:1], 64
s_load_dwordx8 s[48:55], s[0:1], 128
s_load_dwordx4 s[56:59], s[0:1], 160""")
if PROF: A("s_memrealtime s[62:63]")
stamp()
A(f"""v_lshrrev_b32 v4, 6, v0
v_and_b32 v1, 63, v0
v_readfirstlane_b32 s3, v4
v_and_b32 v2, 15, v0
v_lshrrev_b32 v3, 4, v1
s_cmp_lt_u32 s2, 32
s_cbranch_scc1 LGATE
s_sub_u32 s7, s2, 32
s_and_b32 s8, s7, 7
s_lshr_b32 s7, s7, 3
s_mul_i32 s4, s8, 28
s_add_u32 s4, s4, s7
s_mul_i32 s5, s4, 9363
s_lshr_b32 s5, s5, 16
s_mul_i32 s6, s5, 7
s_sub_u32 s6, s4, s6""")
A(f"""s_lshl_b32 s7, s4, 10
v_lshl_add_u32 v4, v0, 1, s7""")
for i in range(6): A(f"v_mov_b32 v{10+i}, 0")
for i in range(3): A(f"v_mov_b32 v{172+i}, 0")
A(f"""s_lshl_b32 s7, s4, 2
v_mul_u32_u24 v5, 3584, v0
v_add_u32 v5, s7, v5
v_subrev_u32 v6, 896, v5
v_max_i32 v6, 0, v6""")
A(f"""v_lshrrev_b32 v7, 2, v2
v_and_b32 v8, 3, v2
v_lshl_add_u32 v7, v7, 4, v8
s_lshr_b32 s7, s3, 1
s_lshl_b32 s7, s7, 2
s_lshl_b32 s8, s5, 6
s_add_u32 s7, s7, s8
v_add_u32 v7, s7, v7
v_mul_u32_u24 v7, 896, v7
v_lshl_add_u32 v7, v3, 4, v7
s_and_b32 s8, s3, 1
s_mul_i32 s8, s8, 448
v_add_u32 v7, s8, v7
s_mul_i32 s9, s3, 7168""")
A(f"""s_lshl_b32 s7, s6, 6
s_lshl_b32 s8, s3, 3
s_add_u32 s7, s7, s8
v_and_b32 v9, 7, v1
v_add_u32 v9, s7, v9
v_mul_u32_u24 v16, 896, v9
v_lshl_add_u32 v16, v3, 4, v16
v_lshlrev_b32 v9, 1, v9
v_cmp_gt_u32 vcc, 8, v2
s_lshl_b32 s7, s4, 2
s_waitcnt lgkmcnt(0)
s_load_dword s10, {Aldt}, s7""")
for i, b in enumerate((Are, Aim, Bre, Bim, Cre, Cim)): A(f"global_load_short_d16_hi v{10+i}, v4, {b}")
for i in range(4): A(f"global_load_dword v{148+i}, v5, {u_} offset:{896*i}")
A(f"global_load_dword v152, v6, {u_}")
for k in range(7):
    A(f"s_add_u32 m0, s9, {960*k}")
    A(f"global_load_lds_dwordx4 v7, {u_} offset:{64*k}")
A(f"""v_mov_b32 v17, s42
v_mov_b32 v18, s40
v_mov_b32 v19, s43
v_mov_b32 v20, s41
v_cndmask_b32 v17, v17, v18, vcc
v_cndmask_b32 v19, v19, v20, vcc
v_add_co_u32 v18, vcc, v17, v16
v_addc_co_u32 v19, vcc, 0, v19, vcc""")
for k in range(14): A(f"global_load_dwordx4 {Q(200+4*k)}, v[18:19], off offset:{64*k}")
for i, b in enumerate((Lre, Lim, Bldt)): A(f"global_load_short_d16_hi v{172+i}, v9, {b}")
A(f"""s_and_b32 s7, s3, 3
s_lshl_b32 s7, s7, 4
s_lshl_b32 s8, s5, 6
s_add_u32 s34, s7, s8
s_lshr_b32 s7, s3, 2
s_lshl_b32 s7, s7, 5
s_lshl_b32 s8, s6, 6
s_add_u32 s35, s7, s8
s_lshl_b32 s7, s35, 1
v_lshl_add_u32 v16, v3, 4, s7
v_add_u32 v17, s34, v2
v_mul_u32_u24 v17, 896, v17
v_add_u32 v17, v17, v16
global_load_dwordx4 {Q(184)}, v17, {u_}
global_load_dwordx4 {Q(188)}, v16, {ADs}
global_load_dwordx4 {Q(192)}, v16, {BDs}""")
A(f"""v_mov_b32 v20, 0
v_mov_b32 v21, 0
v_mov_b32 v22, 0
v_mov_b32 v23, 0
v_lshrrev_b32 v16, 5, v1
v_mul_u32_u24 v16, {K_STR}, v16
v_and_b32 v17, 31, v1
v_min_u32 v17, 29, v17
v_lshl_add_u32 v16, v17, 4, v16
v_add_u32 v16, {K_OFF}, v16
v_lshrrev_b32 v17, 1, v1
v_and_b32 v17, 3, v17
v_mul_u32_u24 v17, {U_CP}, v17
v_and_b32 v18, 1, v1
v_lshl_add_u32 v17, v18, 4, v17
v_add_u32 v17, {U_OFF + 4096}, v17
v_mov_b32 v18, {CNT}
s_cmp_lg_u32 s3, 0
s_cbranch_scc1 LNZ
ds_write_b128 v16, {Q(20)}
ds_write_b128 v17, {Q(20)}
ds_write_b128 v18, {Q(20)}
LNZ:""")
A(f"""s_mul_i32 s13, s3, {G_STR}
s_mov_b32 m0, s13
s_waitcnt lgkmcnt(0)
s_lshl_b32 s7, s10, 16
s_and_b32 s8, s10, 0xffff0000
s_cmp_lt_u32 s3, 4
s_cselect_b32 s7, s7, s8
v_mov_b32 v4, s7""")
dt_from_log(4, 4)
A(f"""v_lshlrev_b32 v7, 4, v3
v_add_u32 v7, s13, v7
v_add_u32 v7, {G_OFF}, v7
s_movk_i32 s7, {G_ROW}
v_mad_u32_u24 v5, v2, s7, v7
v_add_u32 v6, 16, v2
v_min_u32 v6, 20, v6
v_mad_u32_u24 v6, v6, s7, v7
s_waitcnt vmcnt(32)""")
stamp()
A(f"""v_mul_f32 v10, v4, v10
v_mul_f32 v11, v4, v11
v_mul_f32 v10, {LOG2E:#x}, v10
v_mul_f32 v11, {INV2PI:#x}, v11
v_pk_mul_f32 {P(12)}, {P(12)}, {P(4)} op_sel:[0,0] op_sel_hi:[1,0]""")
E = {k: 20 + 2 * i for i, k in enumerate((1, 2, 3, 4, 6, 8, 256, 512, 768, 1024))}
TA, TB, X0, X1 = 40, 42, 44, 46
cv = [48, 49, 50, 51]; ci = [0]
def put(row, r, neg):
    c = cv[ci[0] % 4]; ci[0] += 1
    A(f"v_cvt_pk_bf16_f32 v{c}, v{r}, {'-' if neg else ''}v{r+1}")
    A(f"ds_write_addtid_b32 v{c} offset:{G_OFF + G_ROW*row}")
cexp(E[1], 10, 11, "1.0", 16)
cexp(E[256], 10, 11, fl(256.0), 16)
cexp(E[8], 10, 11, fl(8.0), 16)
cmul(X0, 12, 14)
A("v_mov_b32 v8, 0x3f80"); A(f"ds_write_addtid_b32 v8 offset:{G_OFF}")
put(1, E[1], 1); put(8, E[256], 1)
cmul(E[2], E[1], E[1]); cmul(E[512], E[256], E[256]); put(2, E[2], 1); put(12, E[512], 1)
cmul(E[3], E[2], E[1]); cmul(E[4], E[2], E[2]); put(3, E[3], 1); put(4, E[4], 1)
cmul(E[768], E[512], E[256]); cmul(E[1024], E[512], E[512]); put(14, E[768], 1); put(16, E[1024], 1)
cmul(TA, E[4], E[1]); cmul(E[6], E[4], E[2]); put(5, TA, 1); put(6, E[6], 1)
for (r1, a1, b1), (r2, a2, b2) in (((7, 4, 3), (9, 256, 2)), ((10, 256, 4), (11, 256, 6)), ((13, 512, 4), (15, 768, 4)),
                                   ((17, 1024, 256), (18, 1024, 512)), ((19, 1024, 768), (20, 1024, 1024))):
    cmul(TA, E[a1], E[b1]); cmul(TB, E[a2], E[b2]); put(r1, TA, 1); put(r2, TB, 1)
YF, XF, DT = 52, 84, 116
for jt in range(2):
    for ks in range(4): A(f"ds_read_b128 {Q(YF+16*jt+4*ks)}, v{5+jt} offset:{64*ks}")
E16 = E[2]
cmul(X1, X0, E[8]); cmul(E16, E[8], E[8])
cur = [X0, X1]; alt = [TA, TB]
for at in range(2):
    for a in range(0, 16, 2):
        put(a, cur[0], 0); put(a + 1, cur[1], 0)
        if not (at == 1 and a == 14):
            cmul(alt[0], cur[0], E16); cmul(alt[1], cur[1], E16)
            cur, alt = alt, cur
        if at == 1 and a == 4:
            A("s_waitcnt lgkmcnt(6)")
            for jt in range(2):
                for ks in range(4):
                    A(f"v_mfma_f32_16x16x32_bf16 {Q(DT+8*jt)}, {Q(YF+16*jt+4*ks)}, {Q(XF+4*ks)}, {'0' if ks == 0 else Q(DT+8*jt)}")
    for ks in range(4): A(f"ds_read_b128 {Q(XF+16*at+4*ks)}, v5 offset:{64*ks}")
A(f"""v_max_u32 v8, 1, v3
v_lshrrev_b32 v8, v8, 64
v_mul_u32_u24 v9, v8, v2
v_lshlrev_b32 v10, 4, v3
v_lshlrev_b32 v11, 9, v3
v_cmp_gt_u32 vcc, 2, v3
v_cndmask_b32 v10, v11, v10, vcc
v_add3_u32 v9, v9, v10, s13
v_cmp_eq_u32 vcc, 3, v3
v_mov_b32 v11, 256
v_cndmask_b32 v11, 8, v11, vcc
v_add_u32 v10, v9, v11
v_lshl_add_u32 v11, v8, 4, v9
v_lshl_add_u32 v12, v8, 4, v10
v_lshlrev_b32 v13, 9, v3
v_lshl_add_u32 v13, v2, 2, v13
v_add_u32 v13, s13, v13
v_add_u32 v13, {G_OFF + 2048}, v13
s_waitcnt lgkmcnt(0)""")
for jt in range(2):
    for ks in range(4):
        A(f"v_mfma_f32_16x16x32_bf16 {Q(DT+8*jt+4)}, {Q(YF+16*jt+4*ks)}, {Q(XF+16+4*ks)}, {'0' if ks == 0 else Q(DT+8*jt+4)}")
A(f"""s_waitcnt vmcnt(27)
v_cmp_eq_u32 vcc, 0, v0
s_mov_b32 s7, 0x01000504
s_mov_b32 s8, 0x03020706
v_cndmask_b32 v152, v152, 0, vcc
v_lshlrev_b32 v14, 3, v0
v_sub_u32 v14, {U_OFF + 4088}, v14""")
for ch, sel in ((0, "s7"), (1, "s8")):
    b = 16 + 4 * ch
    A(f"""v_perm_b32 v{b}, v151, v150, {sel}
    v_perm_b32 v{b+1}, v149, v148, {sel}
    v_perm_b32 v{b+2}, v150, v149, {sel}
    v_perm_b32 v{b+3}, v148, v152, {sel}
    ds_write_b64 v14, {P(b)} offset:{2*ch*U_CP}
    ds_write_b64 v14, {P(b+2)} offset:{(2*ch+1)*U_CP}""")
for at in range(2):
    A(f"ds_write_b64 v{9+2*at}, {P(DT+4*at)} offset:{G_OFF}")
    A(f"ds_write_b64 v{10+2*at}, {P(DT+4*at+2)} offset:{G_OFF}")
for at in range(2):
    A(f"ds_write2_b32 v13, v{DT+8+4*at}, v{DT+9+4*at} offset0:{16*at} offset1:{32+16*at}")
    A(f"ds_write2_b32 v13, v{DT+10+4*at}, v{DT+11+4*at} offset0:{64+16*at} offset1:{96+16*at}")
stamp()
LAM, L8, L64, L256S, L8S, CO2 = 172, 174, 176, 178, 180, 182
A("s_waitcnt vmcnt(3)")
dt_from_log(4, 174)
A(f"""v_mov_b32 v6, v172
v_mov_b32 v7, v173
v_mul_f32 v10, v4, v172
v_mul_f32 v11, v4, v173
v_mul_f32 v10, {LOG2E:#x}, v10
v_mul_f32 v11, {INV2PI:#x}, v11
v_lshrrev_b32 v8, 3, v1
v_cvt_f32_u32 v8, v8
v_mul_f32 v9, {fl(256.0)}, v8
v_mul_f32 v8, {fl(8.0)}, v8""")
cexp(LAM, 10, 11, "1.0", 16); cexp(L8, 10, 11, fl(8.0), 16); cexp(L64, 10, 11, fl(64.0), 16)
cexp(L256S, 10, 11, "v9", 16); cexp(L8S, 10, 11, "v8", 16)
A(f"""v_mul_f32 v8, v6, v6
v_fmac_f32 v8, v7, v7
v_rcp_f32 v8, v8
v_add_f32 v12, -1.0, v{LAM}
v_mov_b32 v13, v{LAM+1}
v_add_f32 v8, v8, v8
v_mul_f32 v6, v6, v8
v_mul_f32 v7, -v7, v8""")
cmul(CO2, 12, 6)
A("s_waitcnt vmcnt(0)")
for i in range(4):
    A(f"""v_lshlrev_b32 v{20+2*i}, 16, v{184+i}
    v_and_b32 v{21+2*i}, 0xffff0000, v{184+i}
    v_lshlrev_b32 v{28+2*i}, 16, v{188+i}
    v_and_b32 v{29+2*i}, 0xffff0000, v{188+i}
    v_lshlrev_b32 v{36+2*i}, 16, v{192+i}
    v_and_b32 v{37+2*i}, 0xffff0000, v{192+i}""")
for i in range(4):
    A(f"""v_pk_mul_f32 {P(28+2*i)}, {P(28+2*i)}, {P(20+2*i)}
    v_pk_mul_f32 {P(36+2*i)}, {P(36+2*i)}, {P(20+2*i)}
    v_cvt_pk_bf16_f32 v{28+2*i}, v{28+2*i}, v{29+2*i}
    v_cvt_pk_bf16_f32 v{36+2*i}, v{36+2*i}, v{37+2*i}
    v_lshlrev_b32 v{184+2*i}, 16, v{28+2*i}
    v_and_b32 v{185+2*i}, 0xffff0000, v{28+2*i}
    v_lshlrev_b32 v{192+2*i}, 16, v{36+2*i}
    v_and_b32 v{193+2*i}, 0xffff0000, v{36+2*i}""")
A(f"""s_and_b32 s14, s3, 3
s_and_b32 s7, s3, 4
s_mul_i32 s7, s7, {G_STR}
s_lshl_b32 s8, s14, 9
s_add_u32 s8, s8, 512
s_cmp_eq_u32 s14, 0
s_cselect_b32 s8, 0, s8
s_cselect_b32 s9, 4, 3
s_add_u32 s7, s7, s8
s_add_u32 s7, s7, {G_OFF}
v_lshlrev_b32 v4, s9, v1
v_add_u32 v4, s7, v4
v_add_u32 v5, {G_STR}, v4
v_add_u32 v6, {2*G_STR}, v4
v_add_u32 v7, {3*G_STR}, v4
s_lshr_b32 s15, s3, 2
s_mul_i32 s7, s15, {K_STR}
s_add_u32 s7, s7, {K_OFF + 480}
s_lshl_b32 s8, 256, s14
s_cmp_eq_u32 s14, 0
s_cselect_b32 s8, 0, s8
s_add_u32 s7, s7, s8
s_max_u32 s9, s14, 1
s_add_u32 s9, s9, 2
v_lshlrev_b32 v8, s9, v1
v_add_u32 v8, s7, v8
v_lshlrev_b32 v9, 4, v1
s_waitcnt lgkmcnt(0)
s_barrier""")
stamp()
for i in range(4): A(f"ds_read2_b64 {Q(12+4*i)}, v{4+i} offset0:0 offset1:1")
ACC = 132
order = [(ks, q) for ks in range(14) for q in range(4)]
def rd1(n):
    ks, q = order[n]; A(f"ds_read_b128 {Q(28+4*(n%16))}, v9 offset:{(q*14+ks)*1024}")
for n in range(8): rd1(n)
A(f"""s_waitcnt lgkmcnt(8)
v_pk_add_f32 {P(12)}, {P(12)}, {P(16)}
v_pk_add_f32 {P(14)}, {P(14)}, {P(18)}
v_pk_add_f32 {P(20)}, {P(20)}, {P(24)}
v_pk_add_f32 {P(22)}, {P(22)}, {P(26)}
v_pk_add_f32 {P(12)}, {P(12)}, {P(20)}
v_pk_add_f32 {P(14)}, {P(14)}, {P(22)}
v_cvt_pk_bf16_f32 v16, v12, v12
v_cvt_pk_bf16_f32 v18, v12, v13
v_cvt_pk_bf16_f32 v19, v13, v13
v_cvt_pk_bf16_f32 v22, v14, v14
s_cmp_eq_u32 s14, 0
s_cbranch_scc1 LX0
s_cmp_eq_u32 s14, 1
s_cbranch_scc1 LX1
s_cmp_eq_u32 s14, 2
s_cbranch_scc1 LX2
v_mov_b32 v17, v16
v_mov_b32 v20, v19
v_mov_b32 v21, v19
v_mov_b32 v23, v22
ds_write_b128 v8, {Q(16)}
ds_write_b128 v8, {Q(20)} offset:16
s_branch LX3
LX0:
v_cvt_pk_bf16_f32 v19, v14, v15
ds_write_b64 v8, {P(18)}
s_branch LX3
LX1:
v_cvt_pk_bf16_f32 v17, v13, v14
ds_write_b64 v8, {P(16)}
s_branch LX3
LX2:
v_mov_b32 v17, v18
v_mov_b32 v18, v19
v_mov_b32 v19, v22
ds_write_b128 v8, {Q(16)}
LX3:
s_waitcnt lgkmcnt(0)""")
for n in range(8, 12): rd1(n)
for n in range(56):
    ks, q = order[n]
    if n % 4 == 0 and n >= 8:
        left = min(n + 12, 56) - (n + 4)
        A(f"s_waitcnt lgkmcnt({left})")
    A(f"v_mfma_f32_16x16x32_bf16 {Q(ACC+4*q)}, {Q(28+4*(n%16))}, {Q(200+4*ks)}, {'0' if ks == 0 else Q(ACC+4*q)}")
    if n + 12 < 56: rd1(n + 12)
A("s_barrier")
stamp()
Z = 156
A(f"""s_mul_i32 s7, s3, {HS_STR}
s_add_u32 s60, s7, {HS_OFF}
v_and_b32 v4, 7, v1
v_mul_u32_u24 v5, 80, v4
v_add_u32 v5, s60, v5
v_lshrrev_b32 v6, 3, v1
v_lshl_add_u32 v7, v6, 3, v5""")
for r in range(8):
    A(f"v_mov_b32 v{Z+2*r}, v{ACC+r}"); A(f"v_mov_b32 v{Z+2*r+1}, v{ACC+r+8}")
for r in range(8):
    A(f"v_mov_b32_dpp v{Z+2*r}, v{ACC+r+8} row_ror:8 row_mask:0xf bank_mask:0xc")
    A(f"v_mov_b32_dpp v{Z+2*r+1}, v{ACC+r} row_ror:8 row_mask:0xf bank_mask:0x3")
cur = Z
for r in range(1, 8):
    d = 10 + 2 * (r % 2); cfma(d, cur, LAM, Z + 2 * r, d); cur = d
A(f"ds_write_b64 v7, {P(cur)}")
for i in range(4): A(f"ds_read_b128 {Q(16+4*i)}, v5 offset:{16*i}")
INIT = 154
A(f"""v_mov_b32 v{INIT}, 0
v_mov_b32 v{INIT+1}, 0
s_lshl_b32 s7, s6, 14
s_add_u32 s96, s58, s7
s_addc_u32 s97, s59, 0
s_mov_b32 s98, 16384
s_mov_b32 s99, 0x20000
s_lshl_b32 s7, s5, 9
s_lshl_b32 s61, s3, 6
s_add_u32 s7, s7, s61
v_lshl_add_u32 v153, v4, 3, s7
s_waitcnt lgkmcnt(0)""")
cur = 16
for s in range(1, 8):
    A(f"v_cmp_eq_u32 vcc, {s}, v6")
    d = 10 + 2 * (s % 2); cfma(d, cur, L8, 16 + 2 * s, d)
    A(f"v_cndmask_b32 v{INIT}, v{INIT}, v{cur}, vcc"); A(f"v_cndmask_b32 v{INIT+1}, v{INIT+1}, v{cur+1}, vcc")
    cur = d
A(f"""s_mov_b64 exec, 0xff
buffer_store_dwordx2 {P(cur)}, v153, s[96:99], 0 offen sc1
s_mov_b64 exec, -1""")
A(f"""s_cmp_lt_u32 s3, 4
s_cselect_b32 s44, s44, s46
s_cselect_b32 s45, s45, s47
s_lshr_b32 s7, s14, 1
s_lshl_b32 s7, s7, 5
s_and_b32 s61, s14, 1
s_lshl_b32 s61, s61, 2
s_add_u32 s7, s7, s61
s_lshl_b32 s61, s6, 6
s_add_u32 s7, s7, s61
v_lshrrev_b32 v8, 2, v2
v_and_b32 v9, 3, v2
v_lshl_add_u32 v8, v8, 3, v9
v_add_u32 v8, s7, v8
v_mul_u32_u24 v8, 896, v8
v_lshl_add_u32 v8, v3, 4, v8
s_mul_i32 s7, s15, {14*4096}
s_lshl_b32 s61, s14, 10
s_add_u32 s7, s7, s61""")
for k in range(14):
    A(f"s_add_u32 m0, s7, {(4096-64)*k}")
    A(f"global_load_lds_dwordx4 v8, {BCre} offset:{64*k}")
stamp()
CA = 136; FB = (8, 72)
A(f"""s_lshr_b32 s61, s3, 1
s_and_b32 s61, s61, 1
v_lshlrev_b32 v4, 3, v3
v_sub_u32 v4, v4, v2
v_add_u32 v4, 2031, v4
v_and_b32 v5, 1, v4
v_and_b32 v4, 0xfffe, v4
v_lshlrev_b32 v4, 1, v4
v_mul_u32_u24 v5, {U_CP}, v5
s_mul_i32 s7, s15, {2*U_CP}
s_add_u32 s7, s7, {U_OFF - 960 + 256}
s_lshl_b32 s61, s61, 8
s_sub_u32 s7, s7, s61
v_add3_u32 v4, v4, v5, s7
v_subrev_u32 v5, 1024, v4
v_subrev_u32 v6, 2048, v4
v_subrev_u32 v7, 3072, v4
s_mul_i32 s7, s15, {K_STR}
s_add_u32 s7, s7, {K_OFF + 448 - 192}
s_sub_u32 s7, s7, s61
v_lshlrev_b32 v152, 5, v2
v_lshl_add_u32 v152, v3, 4, v152
v_add_u32 v152, s7, v152""")
SETS = ((7, 6, 1, 0), (5, 4, 3, 2))
def conv_reads(st, k):
    fb = FB[k % 2]; nfr = max(SETS[st]) + 1; L = []
    for i in range(nfr):
        o = (704 - 64 * k - 512 * (i % 2)) // 4
        L.append(f"ds_read2_b32 {P(fb+4*i)}, v{4+i//2} offset0:{o} offset1:{o+1}")
        L.append(f"ds_read2_b32 {P(fb+4*i+2)}, v{4+i//2} offset0:{o+2} offset1:{o+3}")
        L.append(f"ds_read_b128 {Q(fb+32+4*i)}, v152 offset:{512*i + 192 - 64*k}")
    return L
def conv_mfmas(st, k):
    fb = FB[k % 2]; L = []
    for i in range(8):
        for ti, j in enumerate(SETS[st]):
            if i <= j:
                L.append(f"v_mfma_f32_16x16x32_bf16 {Q(CA+4*ti)}, {Q(fb+4*i)}, {Q(fb+32+4*(j-i))}, {'0' if (k == 0 and i == 0) else Q(CA+4*ti)}")
    return L
ncv = [0]
def conv_step(k, first=False):
    n = ncv[0]; ncv[0] += 1
    A(f"s_bitcmp1_b32 s3, 0\ns_cbranch_scc1 LCB{n}")
    for st in range(2):
        if st == 1: A(f"LCB{n}:")
        if first:
            for r in conv_reads(st, k): A(r)
        A("s_waitcnt lgkmcnt(0)")
        rd = conv_reads(st, k + 1) if k < 3 else []
        for m in conv_mfmas(st, k):
            A(m)
            for r in rd[:2]: A(r)
            rd = rd[2:]
        if st == 0: A(f"s_branch LCE{n}")
    A.flush()
    A(f"LCE{n}:")
T = 200
conv_step(0, first=True)
A("s_waitcnt vmcnt(14)")
signal_last(0, 1, T)
conv_step(1)
stamp()
A(f"""v_and_b32 v{T}, 31, v1
v_mul_u32_u24 v{T}, 7, v{T}
v_add_u32 v{T}, s6, v{T}
v_cmp_gt_u32 vcc, s5, v1
v_cndmask_b32 v{T+1}, 0, 1, vcc""")
poll(T, T + 1, T + 2)
A("s_barrier")
stamp()
A(f"""v_lshrrev_b32 v{T}, 3, v1
v_lshlrev_b32 v{T}, 11, v{T}
v_sub_u32 v{T}, v153, v{T}""")
for i in range(4):
    A(f"v_subrev_u32 v{T+1}, {512*(i+1)}, v{T}")
    A(f"buffer_load_dwordx2 {P(T+2+2*i)}, v{T+1}, s[96:99], 0 offen sc1")
conv_step(2)
A(f"""v_and_b32 v{T+10}, 7, v1
v_mul_u32_u24 v{T+11}, 80, v{T+10}
v_add_u32 v{T+11}, s60, v{T+11}
v_lshrrev_b32 v{T+12}, 3, v1
v_lshl_add_u32 v{T+13}, v{T+12}, 3, v{T+11}
s_waitcnt vmcnt(0)""")
stamp()
cfma(T + 14, T + 8, L64, T + 6, T + 14); cfma(T + 16, T + 14, L64, T + 4, T + 16); cfma(T + 14, T + 16, L64, T + 2, T + 14)
cmul(T + 16, T + 14, L256S)
A(f"ds_write_b64 v{T+13}, {P(T+16)}")
for i in range(4): A(f"ds_read_b128 {Q(T+20+4*i)}, v{T+11} offset:{16*i}")
A(f"""v_mul_u32_u24 v{T+14}, 144, v{T+10}
v_lshl_add_u32 v{T+14}, v{T+12}, 4, v{T+14}
v_add_u32 v{T+14}, s60, v{T+14}
v_lshrrev_b32 v{T+15}, 2, v2
v_mul_u32_u24 v{T+15}, 144, v{T+15}
v_lshl_add_u32 v{T+15}, v3, 5, v{T+15}
v_and_b32 v{T+16}, 3, v1
v_lshl_add_u32 v{T+15}, v{T+16}, 3, v{T+15}
v_add_u32 v{T+15}, s60, v{T+15}
s_lshl_b32 s7, s6, 3
s_add_u32 s7, s7, s3
s_lshl_b32 s7, s7, 8
s_mul_i32 s61, s5, {4*28*1024}
s_add_u32 s7, s7, s61
s_add_u32 s7, s7, {WS_H}
v_mul_u32_u24 v{T+16}, {28*1024}, v3
v_lshl_add_u32 v{T+16}, v2, 4, v{T+16}
v_add_u32 v{T+16}, s7, v{T+16}
v_add_u32 v{T+17}, {14*1024}, v{T+16}
s_waitcnt lgkmcnt(0)""")
for a, b in ((20, 22), (24, 26), (28, 30), (32, 34), (20, 24), (28, 32), (20, 28)):
    A(f"v_pk_add_f32 {P(T+a)}, {P(T+a)}, {P(T+b)}")
cfma(T + 18, T + 20, L8S, INIT, T + 18)
cur = T + 18
for r in range(8):
    cfma(Z + 2 * r, cur, LAM, Z + 2 * r, Z + 2 * r); cur = Z + 2 * r
    cmul(T + 20 + 2 * r, cur, CO2)
for r in range(4):
    A(f"v_cvt_pk_bf16_f32 v{T+36+r}, v{T+20+4*r}, v{T+22+4*r}")
    A(f"v_cvt_pk_bf16_f32 v{T+40+r}, -v{T+21+4*r}, -v{T+23+4*r}")
A(f"ds_write_b128 v{T+14}, {Q(T+36)}\nds_write_b128 v{T+14}, {Q(T+40)} offset:1152")
for comp in range(2):
    for hf in range(2):
        A(f"ds_read_b64_tr_b16 {P(T+44+4*comp+2*hf)}, v{T+15} offset:{1152*comp + 576*hf}")
A(f"""s_waitcnt lgkmcnt(0)
global_store_dwordx4 v{T+16}, {Q(T+44)}, {ws} sc1
global_store_dwordx4 v{T+17}, {Q(T+48)}, {ws} sc1""")
stamp()
conv_step(3)
A(f"""s_lshr_b32 s7, s3, 1
s_lshl_b32 s7, s7, 10
s_add_u32 s7, s7, {PART}
v_lshl_add_u32 v4, v1, 4, s7
s_lshl_b32 s7, s3, 12
s_add_u32 s7, s7, {PART}
v_lshl_add_u32 v5, v1, 4, s7
s_waitcnt vmcnt(0)
s_barrier
s_cmp_lg_u32 s3, 0
s_cbranch_scc1 LNF2""")
flag_store(2, T)
A("LNF2:\ns_bitcmp1_b32 s3, 0\ns_cbranch_scc1 LPW1")
for st in range(2):
    if st == 1: A("LPW1:")
    for ti, j in enumerate(SETS[st]): A(f"ds_write_b128 v4, {Q(CA+4*ti)} offset:{4096*j}")
    if st == 0: A("s_branch LPW2")
A(f"""LPW2:
s_lshl_b32 s7, s4, 13
s_lshl_b32 s61, s3, 10
s_add_u32 s7, s7, s61
s_add_u32 s7, s7, {WS_Y}
v_lshlrev_b32 v6, 6, v2
v_lshl_add_u32 v6, v3, 4, v6
v_add_u32 v6, s7, v6
s_waitcnt lgkmcnt(0)
s_barrier""")
for i in range(4): A(f"ds_read_b128 {Q(8+4*i)}, v5 offset:{1024*i}")
A(f"""s_mul_i32 s7, s5, 7
v_min_u32 v{T}, 6, v1
v_add_u32 v{T}, s7, v{T}
v_mov_b32 v{T+1}, 2
s_waitcnt lgkmcnt(0)
v_pk_add_f32 {P(8)}, {P(8)}, {P(12)}
v_pk_add_f32 {P(10)}, {P(10)}, {P(14)}
v_pk_add_f32 {P(16)}, {P(16)}, {P(20)}
v_pk_add_f32 {P(18)}, {P(18)}, {P(22)}""")
for r in range(4): A(f"v_cvt_pk_bf16_f32 v{12+r}, v{8+r}, v{16+r}")
A(f"global_store_dwordx4 v6, {Q(12)}, {ws} sc1")
stamp()
poll(T, T + 1, T + 2)
A("s_barrier")
stamp()
A(f"""s_lshl_b32 s7, s5, 2
s_add_u32 s7, s7, s14
s_mul_i32 s7, s7, 28
s_mul_i32 s61, s15, 14
s_add_u32 s7, s7, s61
s_lshl_b32 s7, s7, 10
s_add_u32 s7, s7, {WS_H + 4096}
v_lshl_add_u32 v6, v1, 4, s7
v_add_u32 v7, 8192, v6""")
for k in range(14):
    A(f"global_load_dwordx4 {Q(200+4*k)}, v{6 + k//8}, {ws} offset:{1024*(k%8) - 4096} sc1")
A("s_waitcnt vmcnt(14)")
signal_last(4, 3, 24)
A(f"""s_mul_i32 s7, s15, {14*4096}
v_lshl_add_u32 v9, v1, 4, s7""")
def rd2(n): A(f"ds_read_b128 {Q(28+4*(n%16))}, v9 offset:{n*1024}")
for n in range(12): rd2(n)
for n in range(56):
    ks, q = n // 4, n % 4
    if q == 0:
        left = min(n + 12, 56) - (n + 4)
        A(f"s_waitcnt vmcnt({13-ks}) lgkmcnt({left})")
    A(f"v_mfma_f32_16x16x32_bf16 {Q(ACC+4*q)}, {Q(28+4*(n%16))}, {Q(200+4*ks)}, {'0' if ks == 0 else Q(ACC+4*q)}")
    if n + 12 < 56: rd2(n + 12)
stamp()
A(f"""s_lshl_b32 s7, s6, 5
v_and_b32 v{T}, 31, v1
v_add_u32 v{T}, s7, v{T}
s_add_u32 s7, s5, 224
v_mov_b32 v{T+3}, s7
v_cmp_gt_u32 vcc, 32, v1
v_cndmask_b32 v{T}, v{T+3}, v{T}, vcc
v_cndmask_b32 v{T+1}, 1, 3, vcc
s_xor_b32 s7, s3, 4
s_lshl_b32 s7, s7, 12
s_add_u32 s7, s7, {PART}
v_lshl_add_u32 v4, v1, 4, s7
s_cmp_lt_u32 s3, 4
s_cbranch_scc1 LE0
ds_write_b128 v5, {Q(ACC)}
ds_write_b128 v5, {Q(ACC+4)} offset:1024
s_branch LE1
LE0:
ds_write_b128 v5, {Q(ACC+8)}
ds_write_b128 v5, {Q(ACC+12)} offset:1024""")
for i in range(8): A(f"v_mov_b32 v{ACC+8+i}, v{ACC+i}")
A("LE1:")
poll(T, T + 1, T + 2)
A(f"""s_lshr_b32 s7, s35, 1
s_lshl_b32 s7, s7, 13
s_add_u32 s7, s7, {WS_Y}
v_add_u32 v8, s34, v2
v_lshlrev_b32 v6, 2, v8
v_add_u32 v7, {WS_G}, v6
v_lshl_add_u32 v6, v3, 15, v6
v_add_u32 v6, s7, v6
v_add_u32 v10, 8192, v6
v_add_u32 v11, 16384, v6
v_add_u32 v12, 24576, v6
v_mul_u32_u24 v8, 1792, v8
v_lshl_add_u32 v8, v3, 5, v8
s_lshl_b32 s7, s35, 2
v_add_u32 v8, s7, v8
s_waitcnt lgkmcnt(0)
s_barrier""")
stamp()
A(f"""global_load_dword v14, v7, {ws} sc1
global_load_dword v16, v6, {ws} sc1
global_load_dword v17, v10, {ws} sc1
global_load_dword v18, v11, {ws} sc1
global_load_dword v19, v12, {ws} sc1
ds_read_b128 {Q(20)}, v4
ds_read_b128 {Q(24)}, v4 offset:1024
s_waitcnt lgkmcnt(0)""")
for i in range(4):
    A(f"v_pk_add_f32 {P(20+2*i)}, {P(20+2*i)}, {P(ACC+8+2*i)}")
    A(f"v_pk_add_f32 {P(20+2*i)}, {P(20+2*i)}, {P(192+2*i)}")
A(f"""s_waitcnt vmcnt(4)
v_sub_f32 v15, 1.0, v14
v_cvt_pk_bf16_f32 v15, v15, v15
v_lshlrev_b32 v15, 16, v15
s_waitcnt vmcnt(0)""")
stamp()
for i in range(4):
    A(f"v_lshlrev_b32 v{28+2*i}, 16, v{16+i}\nv_and_b32 v{29+2*i}, 0xffff0000, v{16+i}")
for i in range(4): A(f"v_pk_add_f32 {P(28+2*i)}, {P(28+2*i)}, {P(184+2*i)}")
for i in range(4): A(f"v_cvt_pk_bf16_f32 v{16+i}, v{28+2*i}, v{29+2*i}")
for i in range(4):
    A(f"v_lshlrev_b32 v{28+2*i}, 16, v{16+i}\nv_and_b32 v{29+2*i}, 0xffff0000, v{16+i}")
for i in range(4): A(f"v_pk_mul_f32 {P(28+2*i)}, {P(28+2*i)}, {P(14)} op_sel:[0,0] op_sel_hi:[1,0]")
for i in range(4): A(f"v_cvt_pk_bf16_f32 v{16+i}, v{28+2*i}, v{29+2*i}")
for i in range(4):
    A(f"v_lshlrev_b32 v{28+2*i}, 16, v{16+i}\nv_and_b32 v{29+2*i}, 0xffff0000, v{16+i}")
for i in range(4): A(f"v_pk_fma_f32 {P(28+2*i)}, {P(20+2*i)}, {P(14)}, {P(28+2*i)} op_sel:[0,1,0] op_sel_hi:[1,1,1]")
A(f"global_store_dwordx4 v8, {Q(28)}, {out_}\nglobal_store_dwordx4 v8, {Q(32)}, {out_} offset:16")
if PROF:
    A("s_waitcnt vmcnt(0)"); stamp()
    A(f"""s_memrealtime s[60:61]
    s_waitcnt lgkmcnt(0)
    s_lshl_b32 s7, s4, 3
    s_add_u32 s7, s7, s3
    s_lshl_b32 s7, s7, 7
    s_add_u32 s7, s7, {WS_P}
    v_mov_b32 v4, s7
    s_mov_b64 exec, 1""")
    for i, r in enumerate([62, 60] + [64 + 2 * k for k in range(nstamp[0])]):
        A(f"v_mov_b32 v5, s{r}\nglobal_store_dword v4, v5, {ws} offset:{4*i}")
A("s_endpgm")
A(f"""LGATE:
s_and_b32 s7, s2, 7
s_lshl_b32 s7, s7, 2
s_lshr_b32 s8, s2, 3
s_add_u32 s5, s7, s8
s_add_u32 s4, s5, 224
s_lshl_b32 s7, s5, 6
s_lshl_b32 s8, s3, 3
s_add_u32 s9, s7, s8
s_mul_i32 s7, s9, 896
v_lshlrev_b32 v4, 4, v1
v_add_u32 v5, s7, v4
v_add_u32 v6, 3584, v5""")
for i in range(16): A(f"v_mov_b32 v{60+i}, 0")
A(f"""s_waitcnt lgkmcnt(0)
s_mov_b32 exec_lo, -1
s_mov_b32 exec_hi, 0xffffff
global_load_dwordx4 {Q(8)}, v4, {gw}""")
for i in range(8): A(f"global_load_dwordx4 {Q(12+4*i)}, v{5+i//4}, {u_} offset:{896*(i%4)}")
A("s_waitcnt vmcnt(8)")
for k in range(4): A(f"v_lshlrev_b32 v{44+2*k}, 16, v{8+k}\nv_and_b32 v{45+2*k}, 0xffff0000, v{8+k}")
for i in range(8):
    A(f"s_waitcnt vmcnt({7-i})")
    for k in range(4): A(f"v_lshlrev_b32 v{52+2*k}, 16, v{12+4*i+k}\nv_and_b32 v{53+2*k}, 0xffff0000, v{12+4*i+k}")
    for k in range(4): A(f"v_pk_mul_f32 {P(52+2*k)}, {P(52+2*k)}, {P(44+2*k)}")
    for k in range(4): A(f"v_cvt_pk_bf16_f32 v{8+k}, v{52+2*k}, v{53+2*k}")
    for k in range(4): A(f"v_lshlrev_b32 v{52+2*k}, 16, v{8+k}\nv_and_b32 v{53+2*k}, 0xffff0000, v{8+k}")
    for k in range(4): A(f"v_pk_add_f32 {P(60+2*i)}, {P(60+2*i)}, {P(52+2*k)}")
A("s_mov_b64 exec, -1")
for i in range(8): A(f"v_add_f32 v{60+2*i}, v{60+2*i}, v{61+2*i}")
for sh in ("row_shr:1 row_mask:0xf", "row_shr:2 row_mask:0xf", "row_shr:4 row_mask:0xf", "row_shr:8 row_mask:0xf", "row_bcast:15 row_mask:0xa", "row_bcast:31 row_mask:0xc"):
    for i in range(8): A(f"v_add_f32_dpp v{60+2*i}, v{60+2*i}, v{60+2*i} {sh} bank_mask:0xf")
for i in range(8): A(f"v_readlane_b32 s{64+i}, v{60+2*i}, 63")
for i in range(8): A(f"v_writelane_b32 v8, s{64+i}, {i}")
A(f"""v_cvt_pk_bf16_f32 v8, v8, v8
v_lshlrev_b32 v8, 16, v8
v_mul_f32 v8, {(LOG2E | 0x80000000):#x}, v8
v_exp_f32 v8, v8
v_add_f32 v8, 1.0, v8
v_rcp_f32 v8, v8
s_lshl_b32 s7, s9, 2
s_add_u32 s7, s7, {WS_G}
v_cvt_pk_bf16_f32 v8, v8, v8
v_lshlrev_b32 v8, 16, v8
v_lshl_add_u32 v9, v1, 2, s7
s_mov_b64 exec, 0xff
global_store_dword v9, v8, {ws} sc1
s_mov_b64 exec, -1
s_waitcnt vmcnt(0)
s_barrier
s_cmp_lg_u32 s3, 0
s_cbranch_scc1 LEND""")
flag_store(1, 10)
A("LEND:\ns_endpgm")
hdr = open("cdna_kernels/%s.s.ref" % NAME).read().split("; Override launch")[0]
print(hdr + f"""; @launch grid=(256,1,1) block=(512,1,1) lds=163840
.amdgcn_target "amdgcn-amd-amdhsa--gfx950"
.text
.globl {NAME}_kernel
.p2align 8
.type {NAME}_kernel,@function
{NAME}_kernel:
""" + A.text() + f""".section .rodata,"a"
.p2align 6
.amdhsa_kernel {NAME}_kernel
  .amdhsa_next_free_vgpr 256
  .amdhsa_next_free_sgpr 102
  .amdhsa_accum_offset 256
  .amdhsa_group_segment_fixed_size 0
  .amdhsa_kernarg_size 176
  .amdhsa_user_sgpr_count 2
  .amdhsa_user_sgpr_kernarg_segment_ptr 1
  .amdhsa_system_sgpr_workgroup_id_x 1
.end_amdhsa_kernel""")
print("nops inserted:", A.nops, "stamps:", nstamp[0], file=sys.stderr)
```

```python
import sys
from asmlib import Asm
PROF = "prof" in sys.argv
NAME = "gated_mix__ssm_conv_s4__ssm_conv_s5__prompt"
A = Asm()
G_OFF, G_STR, G_ROW = 57344, 4608, 288
BR_OFF = 94208
U_OFF, U_CP = 114688, 4288
K_OFF, K_STR = 131840, 4672
HS_OFF, HS_STR = 141184, 2304
CNT = 159744
PART = 114688
WS_H, WS_Y, WS_U, WS_G, WS_F, WS_E, WS_P = 0x40000, 0x400000, 0x800000, 0xC00000, 0xC10000, 0xC20000, 0xD00000
NON = 's33'
PS = 1280
LOG2E, INV2PI = 0x3fb8aa3b, 0x3e22f983
def fl(x):
    import struct; return "0x%08x" % struct.unpack("<I", struct.pack("<f", x))[0]
def P(r): return "v[%d:%d]" % (r, r + 1)
def Q(r): return "v[%d:%d]" % (r, r + 3)
u_, Are, Aim, Bre, Bim, Cre, Cim, Aldt, ADs, Lre, Lim, BBre, BBim, BCre, BCim, Bldt, BDs, gw, out_, dbg, ws = [
    "s[%d:%d]" % (i, i + 1) for i in (16, 18, 20, 22, 24, 26, 28, 30, 32, 36, 38, 40, 42, 44, 46, 48, 50, 52, 54, 56, 58)]
nstamp = [0]
def stamp():
    if PROF:
        A("s_memtime s[%d:%d]" % (64 + 2 * nstamp[0], 65 + 2 * nstamp[0])); nstamp[0] += 1
def cmul(d, a, b):
    A(f"v_pk_mul_f32 {P(d)}, {P(a)}, {P(b)} op_sel:[0,0] op_sel_hi:[0,1]")
    A(f"v_pk_fma_f32 {P(d)}, {P(a)}, {P(b)}, {P(d)} op_sel:[1,1,0] op_sel_hi:[1,0,1] neg_lo:[1,0,0]")
def cfma(d, a, b, c, t):
    A(f"v_pk_fma_f32 {P(t)}, {P(a)}, {P(b)}, {P(c)} op_sel:[0,0,0] op_sel_hi:[0,1,1]")
    A(f"v_pk_fma_f32 {P(d)}, {P(a)}, {P(b)}, {P(t)} op_sel:[1,1,0] op_sel_hi:[1,0,1] neg_lo:[1,0,0]")
def cexp(d, ar, rev, k, t):
    A(f"""v_mul_f32 v{t}, {k}, v{ar}
    v_mul_f32 v{t+1}, {k}, v{rev}
    v_exp_f32 v{t}, v{t}
    v_rndne_f32 v{t+2}, v{t+1}
    v_sub_f32 v{t+1}, v{t+1}, v{t+2}
    v_cos_f32 v{d}, v{t+1}
    v_sin_f32 v{d+1}, v{t+1}
    v_pk_mul_f32 {P(d)}, {P(d)}, {P(t)} op_sel:[0,0] op_sel_hi:[1,0]""")
def dt_from_log(d, src):
    A(f"""v_mul_f32 v{d}, {LOG2E:#x}, v{src}
    v_exp_f32 v{d}, v{d}
    v_cvt_pk_bf16_f32 v{d}, v{d}, v{d}
    v_lshlrev_b32 v{d}, 16, v{d}""")

ntag = [0]
def tagged(issue, check, waitn=0):
    n = ntag[0]; ntag[0] += 1
    A(f"s_mov_b32 s7, 0\ns_waitcnt vmcnt({waitn})\nLTG{n}:")
    check()
    A(f"""s_cbranch_vccz LTD{n}
    s_add_u32 s7, s7, 1
    s_cmp_gt_u32 s7, 0x40000
    s_cbranch_scc1 LTD{n}
    s_sleep 2""")
    issue()
    A(f"s_waitcnt vmcnt(0)\ns_branch LTG{n}\nLTD{n}:")
def chk(tags, t, exp=None):
    def f():
        for i, r in enumerate(tags):
            e = NON if exp is None else f"v{exp[i]}"
            if i == 0: A(f"v_xor_b32 v{t}, {e}, v{r}")
            else: A(f"v_xor_b32 v{t+1}, {e}, v{r}\nv_or_b32 v{t}, v{t}, v{t+1}")
        A(f"v_cmp_ne_u32 vcc, 0, v{t}")
    return f
bg = []
def bgemit(n=1):
    for _ in range(n):
        if bg: A(bg.pop(0))
A(f"""s_cmp_ge_u32 s2, 256
s_cbranch_scc1 LEND
s_load_dwordx4 s[56:59], s[0:1], 160
s_load_dwordx16 s[16:31], s[0:1], 0
s_load_dwordx16 s[32:47], s[0:1], 64
s_load_dwordx8 s[48:55], s[0:1], 128""")
if PROF: A("s_memrealtime s[62:63]")
stamp()
A(f"""v_lshrrev_b32 v4, 6, v0
v_and_b32 v1, 63, v0
v_readfirstlane_b32 s3, v4
v_and_b32 v2, 15, v0
v_lshrrev_b32 v3, 4, v1
s_mov_b32 s12, {WS_E}
s_cmp_lt_u32 s2, 32
s_cbranch_scc1 LGATE
s_sub_u32 s7, s2, 32
s_and_b32 s8, s7, 7
s_lshr_b32 s7, s7, 3
s_mul_i32 s4, s8, 28
s_add_u32 s4, s4, s7
s_mul_i32 s5, s4, 9363
s_lshr_b32 s5, s5, 16
s_mul_i32 s6, s5, 7
s_sub_u32 s6, s4, s6
s_lshl_b32 s7, s4, 10
v_lshl_add_u32 v4, v0, 1, s7""")
for i in range(6): A(f"v_mov_b32 v{10+i}, 0")
for i in range(3): A(f"v_mov_b32 v{172+i}, 0")
A(f"""v_lshrrev_b32 v16, 3, v1
v_and_b32 v9, 7, v1
v_xor_b32 v17, v9, v16
v_lshlrev_b32 v17, 4, v17
v_lshrrev_b32 v5, 2, v16
v_and_b32 v6, 3, v16
v_lshl_add_u32 v5, v5, 4, v6
s_and_b32 s7, s3, 1
s_lshl_b32 s7, s7, 5
s_lshr_b32 s8, s3, 1
s_lshl_b32 s8, s8, 2
s_add_u32 s7, s7, s8
s_lshl_b32 s8, s5, 6
s_add_u32 s7, s7, s8
v_add_u32 v5, s7, v5
s_movk_i32 s9, 896
v_mad_u32_u24 v148, v5, s9, v17
s_lshl_b32 s7, s6, 6
s_lshl_b32 s8, s3, 3
s_add_u32 s7, s7, s8
v_add_u32 v5, s7, v16
v_mad_u32_u24 v149, v5, s9, v17
v_add_u32 v9, s7, v9
v_lshlrev_b32 v9, 1, v9
s_lshl_b32 s8, s5, 6
v_add_u32 v6, s8, v1
s_lshl_b32 s7, s7, 1
v_mul_u32_u24 v7, 896, v6
v_add_u32 v7, s7, v7
s_lshl_b32 s7, s4, 2
s_waitcnt lgkmcnt(0)
s_load_dword s10, {Aldt}, s7
s_load_dword s11, {ws}, s12""")
for i, b in enumerate((Are, Aim, Bre, Bim, Cre, Cim)): A(f"global_load_short_d16_hi v{10+i}, v4, {b}")
A(f"global_load_dwordx4 {Q(140)}, v7, {u_}")
for i, b in enumerate((Lre, Lim, Bldt)): A(f"global_load_short_d16_hi v{172+i}, v9, {b}")
A(f"""s_add_u32 s7, s3, s6
s_and_b32 s100, s7, 3
s_lshr_b32 s101, s7, 2
s_and_b32 s101, s101, 1
s_lshl_b32 s7, s100, 4
s_lshl_b32 s8, s5, 6
s_add_u32 s34, s7, s8
s_lshl_b32 s7, s101, 5
s_lshl_b32 s8, s6, 6
s_add_u32 s35, s7, s8
s_lshl_b32 s7, s35, 1
v_lshl_add_u32 v18, v3, 4, s7
v_add_u32 v19, s34, v2
v_mad_u32_u24 v19, v19, s9, v18
global_load_dwordx4 {Q(184)}, v19, {u_}
global_load_dwordx4 {Q(188)}, v18, {ADs}
global_load_dwordx4 {Q(192)}, v18, {BDs}
s_mul_i32 s13, s3, {G_STR}
s_mul_i32 s14, s3, 7168
s_lshl_b32 s15, s3, 13
s_add_u32 s15, s15, {BR_OFF}
s_and_b32 s60, s5, 3
s_cmp_eq_u32 s60, 3
s_cselect_b32 s61, 0, s60
s_mov_b32 s12, s6""")
def ld_x():
    return f"""s_lshl_b32 s7, s12, 7
    v_add_u32 v150, s7, v148
    s_lshl_b32 s7, s12, 10
    s_add_u32 m0, s7, s14
    s_add_u32 s12, s12, 1
    global_load_lds_dwordx4 v150, {u_}
    s_mov_b32 m0, s13
    s_cmp_eq_u32 s12, 7
    s_cselect_b32 s12, 0, s12"""
def ld_b1():
    return f"""s_lshl_b32 s7, s60, 7
    v_add_u32 v150, s7, v149
    s_lshl_b32 s7, s60, 11
    s_add_u32 m0, s7, s15
    s_add_u32 s60, s60, 1
    global_load_lds_dwordx4 v150, {BBre}
    s_add_u32 m0, m0, 1024
    s_and_b32 s60, s60, 3
    global_load_lds_dwordx4 v150, {BBim}
    s_mov_b32 m0, s13"""
def ld_b2(i):
    return f"""s_lshl_b32 s7, s61, 7
    v_add_u32 v150, s7, v149
    s_add_u32 s61, s61, 1
    global_load_dwordx4 {Q(232+8*i)}, v150, {BBre} offset:512
    global_load_dwordx4 {Q(236+8*i)}, v150, {BBim} offset:512
    s_cmp_eq_u32 s61, 3
    s_cselect_b32 s61, 0, s61"""
A(ld_x()); A(ld_b1()); A(ld_b2(0))
bg.extend([ld_x(), ld_b1(), ld_x(), ld_b2(1), ld_x(), ld_b1(), ld_x(), ld_b2(2), ld_x(), ld_b1(), ld_x()])
A(f"""s_waitcnt lgkmcnt(0)
s_add_u32 {NON}, s11, 0x9E3779B9
s_lshl_b32 s7, s10, 16
s_and_b32 s8, s10, 0xffff0000
s_cmp_lt_u32 s3, 4
s_cselect_b32 s7, s7, s8
v_mov_b32 v4, s7""")
dt_from_log(4, 4)
A(f"""s_lshl_b32 s7, s6, 5
s_lshl_b32 s8, s3, 2
s_add_u32 s7, s7, s8
s_lshl_b32 s7, s7, 14
s_add_u32 s7, s7, {WS_U}
v_lshl_add_u32 v151, v6, 3, s7
v_lshlrev_b32 v7, 4, v3
v_add_u32 v7, s13, v7
v_add_u32 v7, {G_OFF}, v7
s_movk_i32 s7, {G_ROW}
v_mad_u32_u24 v5, v2, s7, v7
v_min_u32 v6, 4, v2
v_mad_u32_u24 v6, v6, s7, v7
v_mov_b32 v145, {NON}
v_mov_b32 v147, {NON}
s_waitcnt vmcnt(12)""")
stamp()
A(f"""v_mul_f32 v10, v4, v10
v_mul_f32 v11, v4, v11
v_mul_f32 v10, {LOG2E:#x}, v10
v_mul_f32 v11, {INV2PI:#x}, v11
v_pk_mul_f32 {P(12)}, {P(12)}, {P(4)} op_sel:[0,0] op_sel_hi:[1,0]""")
E = {k: 20 + 2 * i for i, k in enumerate((1, 2, 3, 4, 6, 8, 256, 512, 768, 1024))}
TA, TB, X0, X1 = 40, 42, 44, 46
cv = [48, 49, 50, 51]; ci = [0]
def put(row, r, neg):
    c = cv[ci[0] % 4]; ci[0] += 1
    A(f"v_cvt_pk_bf16_f32 v{c}, v{r}, {'-' if neg else ''}v{r+1}")
    A(f"ds_write_addtid_b32 v{c} offset:{G_OFF + G_ROW*(row%16)}")
    if ci[0] % 4 == 0: bgemit()
cexp(E[1], 10, 11, "1.0", 16)
cexp(E[256], 10, 11, fl(256.0), 16)
A("s_waitcnt vmcnt(11)")
for i in range(4):
    A(f"v_mov_b32 v{144+2*(i%2)}, v{140+i}")
    if i: A(f"v_add_u32 v151, 16384, v151")
    A(f"global_store_dwordx2 v151, {P(144+2*(i%2))}, {ws} sc1")
cexp(E[8], 10, 11, fl(8.0), 16)
cmul(X0, 12, 14)
A("v_mov_b32 v8, 0x3f80"); A(f"ds_write_addtid_b32 v8 offset:{G_OFF}")
put(1, E[1], 1); put(8, E[256], 1)
cmul(E[2], E[1], E[1]); cmul(E[512], E[256], E[256]); put(2, E[2], 1); put(12, E[512], 1)
cmul(E[3], E[2], E[1]); cmul(E[4], E[2], E[2]); put(3, E[3], 1); put(4, E[4], 1)
cmul(E[768], E[512], E[256]); cmul(E[6], E[4], E[2]); put(14, E[768], 1); put(6, E[6], 1)
YF, XF, DT = 52, 84, 116
for (r1, a1, b1), (r2, a2, b2) in (((5, 4, 1), (7, 4, 3)), ((9, 256, 2), (10, 256, 4)), ((11, 256, 6), (13, 512, 4))):
    cmul(TA, E[a1], E[b1]); cmul(TB, E[a2], E[b2]); put(r1, TA, 1); put(r2, TB, 1)
cmul(TA, E[768], E[4]); cmul(E[1024], E[512], E[512]); put(15, TA, 1)
for ks in range(4): A(f"ds_read_b128 {Q(YF+4*ks)}, v5 offset:{64*ks}")
put(16, E[1024], 1)
for (r1, a1, b1), (r2, a2, b2) in (((17, 1024, 256), (18, 1024, 512)), ((19, 1024, 768), (20, 1024, 1024))):
    cmul(TA, E[a1], E[b1]); cmul(TB, E[a2], E[b2]); put(r1, TA, 1); put(r2, TB, 1)
for ks in range(4): A(f"ds_read_b128 {Q(YF+16+4*ks)}, v6 offset:{64*ks}")
E16 = E[2]
cmul(X1, X0, E[8]); cmul(E16, E[8], E[8])
cur = [X0, X1]; alt = [TA, TB]
for at in range(2):
    for a in range(0, 16, 2):
        put(a, cur[0], 0); put(a + 1, cur[1], 0)
        if not (at == 1 and a == 14):
            cmul(alt[0], cur[0], E16); cmul(alt[1], cur[1], E16)
            cur, alt = alt, cur
        if at == 1 and a == 4:
            A("s_waitcnt lgkmcnt(6)")
            for jt in range(2):
                for ks in range(4):
                    A(f"v_mfma_f32_16x16x32_bf16 {Q(DT+8*jt)}, {Q(YF+16*jt+4*ks)}, {Q(XF+4*ks)}, {'0' if ks == 0 else Q(DT+8*jt)}")
    for ks in range(4): A(f"ds_read_b128 {Q(XF+16*at+4*ks)}, v5 offset:{64*ks}")
assert not bg
A(f"""v_max_u32 v8, 1, v3
v_lshrrev_b32 v8, v8, 64
v_mul_u32_u24 v9, v8, v2
v_lshlrev_b32 v10, 4, v3
v_lshlrev_b32 v11, 9, v3
v_cmp_gt_u32 vcc, 2, v3
v_cndmask_b32 v10, v11, v10, vcc
v_add3_u32 v9, v9, v10, s13
v_cmp_eq_u32 vcc, 3, v3
v_mov_b32 v11, 256
v_cndmask_b32 v11, 8, v11, vcc
v_add_u32 v10, v9, v11
v_lshl_add_u32 v11, v8, 4, v9
v_lshl_add_u32 v12, v8, 4, v10
v_lshlrev_b32 v13, 9, v3
v_lshl_add_u32 v13, v2, 2, v13
v_add_u32 v13, s13, v13
v_add_u32 v13, {G_OFF + 2048}, v13
s_waitcnt lgkmcnt(0)""")
for jt in range(2):
    for ks in range(4):
        A(f"v_mfma_f32_16x16x32_bf16 {Q(DT+8*jt+4)}, {Q(YF+16*jt+4*ks)}, {Q(XF+16+4*ks)}, {'0' if ks == 0 else Q(DT+8*jt+4)}")
A(f"""s_lshl_b32 s7, s4, 14
s_lshl_b32 s8, s3, 11
s_add_u32 s7, s7, s8
s_add_u32 s7, s7, {WS_U}
v_lshl_add_u32 v151, v1, 4, s7""")
def iss_u():
    A(f"global_load_dwordx4 {Q(140)}, v151, {ws} sc1\nglobal_load_dwordx4 {Q(144)}, v151, {ws} offset:1024 sc1")
iss_u()
for at in range(2):
    A(f"ds_write_b64 v{9+2*at}, {P(DT+4*at)} offset:{G_OFF}")
    A(f"ds_write_b64 v{10+2*at}, {P(DT+4*at+2)} offset:{G_OFF}")
for at in range(2):
    A(f"ds_write2_b32 v13, v{DT+8+4*at}, v{DT+9+4*at} offset0:{16*at} offset1:{32+16*at}")
    A(f"ds_write2_b32 v13, v{DT+10+4*at}, v{DT+11+4*at} offset0:{64+16*at} offset1:{96+16*at}")
stamp()
LAM, L8, L64, L256S, L8S, CO2 = 172, 174, 176, 178, 180, 182
A("s_waitcnt vmcnt(27)")
dt_from_log(4, 174)
A(f"""v_mov_b32 v6, v172
v_mov_b32 v7, v173
v_mul_f32 v10, v4, v172
v_mul_f32 v11, v4, v173
v_mul_f32 v10, {LOG2E:#x}, v10
v_mul_f32 v11, {INV2PI:#x}, v11
v_lshrrev_b32 v8, 3, v1
v_cvt_f32_u32 v8, v8
v_mul_f32 v9, {fl(256.0)}, v8
v_mul_f32 v8, {fl(8.0)}, v8""")
cexp(LAM, 10, 11, "1.0", 16); cexp(L8, 10, 11, fl(8.0), 16); cexp(L64, 10, 11, fl(64.0), 16)
cexp(L256S, 10, 11, "v9", 16); cexp(L8S, 10, 11, "v8", 16)
A(f"""v_mul_f32 v8, v6, v6
v_fmac_f32 v8, v7, v7
v_rcp_f32 v8, v8
v_add_f32 v12, -1.0, v{LAM}
v_mov_b32 v13, v{LAM+1}
v_add_f32 v8, v8, v8
v_mul_f32 v6, v6, v8
v_mul_f32 v7, -v7, v8""")
cmul(CO2, 12, 6)
for i in range(4):
    A(f"""v_lshlrev_b32 v{20+2*i}, 16, v{184+i}
    v_and_b32 v{21+2*i}, 0xffff0000, v{184+i}
    v_lshlrev_b32 v{28+2*i}, 16, v{188+i}
    v_and_b32 v{29+2*i}, 0xffff0000, v{188+i}
    v_lshlrev_b32 v{36+2*i}, 16, v{192+i}
    v_and_b32 v{37+2*i}, 0xffff0000, v{192+i}""")
for i in range(4):
    A(f"""v_pk_mul_f32 {P(28+2*i)}, {P(28+2*i)}, {P(20+2*i)}
    v_pk_mul_f32 {P(36+2*i)}, {P(36+2*i)}, {P(20+2*i)}
    v_cvt_pk_bf16_f32 v{28+2*i}, v{28+2*i}, v{29+2*i}
    v_cvt_pk_bf16_f32 v{36+2*i}, v{36+2*i}, v{37+2*i}
    v_lshlrev_b32 v{184+2*i}, 16, v{28+2*i}
    v_and_b32 v{185+2*i}, 0xffff0000, v{28+2*i}
    v_lshlrev_b32 v{192+2*i}, 16, v{36+2*i}
    v_and_b32 v{193+2*i}, 0xffff0000, v{36+2*i}""")
A(f"""v_and_b32 v4, 7, v2
v_xor_b32 v5, v4, v3
v_lshlrev_b32 v5, 4, v5
v_lshl_add_u32 v5, v4, 7, v5
v_lshrrev_b32 v4, 3, v2
v_lshl_add_u32 v6, v4, 10, v5
v_add_u32 v6, s15, v6
v_xor_b32 v7, 64, v6
s_movk_i32 s7, 7168
v_mad_u32_u24 v152, v4, s7, v5
v_xor_b32 v153, 64, v152
v_lshl_add_u32 v8, v1, 4, s15
s_waitcnt vmcnt(2)""")
stamp()
for ks in range(8): A(f"ds_read_b128 {Q(200+4*ks)}, v{6+ks%2} offset:{2048*(ks//2)}")
for i in range(3):
    A(f"""s_lshl_b32 s7, s61, 11
    v_add_u32 v9, s7, v8
    s_add_u32 s61, s61, 1
    s_cmp_eq_u32 s61, 3
    s_cselect_b32 s61, 0, s61
    ds_write_b128 v9, {Q(232+8*i)}
    ds_write_b128 v9, {Q(236+8*i)} offset:1024""")
for ks in range(8, 14): A(f"ds_read_b128 {Q(200+4*ks)}, v{6+ks%2} offset:{2048*(ks//2-4)}")
A(f"""s_and_b32 s14, s3, 3
s_and_b32 s7, s3, 4
s_mul_i32 s7, s7, {G_STR}
s_lshl_b32 s8, s14, 9
s_add_u32 s8, s8, 512
s_cmp_eq_u32 s14, 0
s_cselect_b32 s8, 0, s8
s_cselect_b32 s9, 4, 3
s_add_u32 s7, s7, s8
s_add_u32 s7, s7, {G_OFF}
v_lshlrev_b32 v4, s9, v1
v_add_u32 v4, s7, v4
v_add_u32 v5, {G_STR}, v4
v_add_u32 v6, {2*G_STR}, v4
v_add_u32 v7, {3*G_STR}, v4
s_lshr_b32 s15, s3, 2
s_mul_i32 s7, s15, {K_STR}
s_add_u32 s7, s7, {K_OFF + 480}
s_lshl_b32 s8, 256, s14
s_cmp_eq_u32 s14, 0
s_cselect_b32 s8, 0, s8
s_add_u32 s7, s7, s8
s_max_u32 s9, s14, 1
s_add_u32 s9, s9, 2
v_lshlrev_b32 v8, s9, v1
v_add_u32 v8, s7, v8
s_waitcnt lgkmcnt(0)
s_barrier""")
stamp()
for i in range(4): A(f"ds_read2_b64 {Q(12+4*i)}, v{4+i} offset0:0 offset1:1")
ACC = 124
order = [(ks, q) for ks in range(14) for q in range(4)]
def rd1(n):
    ks, q = order[n]; A(f"ds_read_b128 {Q(28+4*(n%16))}, v{152+ks%2} offset:{q*14336+(ks//2)*1024}")
for n in range(8): rd1(n)
A(f"""s_waitcnt lgkmcnt(8)
v_pk_add_f32 {P(12)}, {P(12)}, {P(16)}
v_pk_add_f32 {P(14)}, {P(14)}, {P(18)}
v_pk_add_f32 {P(20)}, {P(20)}, {P(24)}
v_pk_add_f32 {P(22)}, {P(22)}, {P(26)}
v_pk_add_f32 {P(12)}, {P(12)}, {P(20)}
v_pk_add_f32 {P(14)}, {P(14)}, {P(22)}
v_cvt_pk_bf16_f32 v16, v12, v12
v_cvt_pk_bf16_f32 v18, v12, v13
v_cvt_pk_bf16_f32 v19, v13, v13
v_cvt_pk_bf16_f32 v22, v14, v14
s_cmp_eq_u32 s14, 0
s_cbranch_scc1 LX0
s_cmp_eq_u32 s14, 1
s_cbranch_scc1 LX1
s_cmp_eq_u32 s14, 2
s_cbranch_scc1 LX2
v_mov_b32 v17, v16
v_mov_b32 v20, v19
v_mov_b32 v21, v19
v_mov_b32 v23, v22
ds_write_b128 v8, {Q(16)}
ds_write_b128 v8, {Q(20)} offset:16
s_branch LX3
LX0:
v_cvt_pk_bf16_f32 v19, v14, v15
ds_write_b64 v8, {P(18)}
s_branch LX3
LX1:
v_cvt_pk_bf16_f32 v17, v13, v14
ds_write_b64 v8, {P(16)}
s_branch LX3
LX2:
v_mov_b32 v17, v18
v_mov_b32 v18, v19
v_mov_b32 v19, v22
ds_write_b128 v8, {Q(16)}
LX3:
v_mov_b32 v20, 0
v_mov_b32 v21, 0
v_mov_b32 v22, 0
v_mov_b32 v23, 0
s_cmp_lg_u32 s3, 0
s_cbranch_scc1 LNZ
v_lshrrev_b32 v16, 5, v1
v_mul_u32_u24 v16, {K_STR}, v16
v_and_b32 v17, 31, v1
v_min_u32 v17, 29, v17
v_lshl_add_u32 v16, v17, 4, v16
v_add_u32 v16, {K_OFF}, v16
v_lshrrev_b32 v17, 1, v1
v_and_b32 v17, 3, v17
v_mul_u32_u24 v17, {U_CP}, v17
v_and_b32 v18, 1, v1
v_lshl_add_u32 v18, v18, 4, v17
v_add_u32 v18, {U_OFF + 4096}, v18
v_mov_b32 v19, {CNT}
ds_write_b128 v16, {Q(20)}
ds_write_b128 v18, {Q(20)}
ds_write_b128 v19, {Q(20)}
v_mov_b32 v19, {U_OFF + U_CP + 4094}
ds_write_b16 v19, v20
ds_write_b16 v19, v20 offset:{2*U_CP}
LNZ:
s_waitcnt lgkmcnt(0)""")
for n in range(8, 12): rd1(n)
for n in range(56):
    ks, q = order[n]
    if n % 4 == 0 and n >= 8:
        left = min(n + 12, 56) - (n + 4)
        A(f"s_waitcnt lgkmcnt({left})")
    A(f"v_mfma_f32_16x16x32_bf16 {Q(ACC+4*q)}, {Q(28+4*(n%16))}, {Q(200+4*ks)}, {'0' if ks == 0 else Q(ACC+4*q)}")
    if n + 12 < 56: rd1(n + 12)
tagged(iss_u, chk([141, 143, 145, 147], 4))
stamp()
A(f"""s_mov_b32 s7, 0x01000504
s_mov_b32 s8, 0x03020706
s_lshl_b32 s9, s3, 9
s_sub_u32 s9, {U_OFF + 4092 - 256}, s9
v_lshlrev_b32 v4, 2, v1
v_sub_u32 v4, s9, v4""")
for hf in range(2):
    a, b = 140 + 4 * hf, 142 + 4 * hf
    o = 256 - 256 * hf
    A(f"""v_perm_b32 v{6+2*hf}, v{b}, v{a}, s7
    v_perm_b32 v{7+2*hf}, v{b}, v{a}, s8
    ds_write_b32 v4, v{6+2*hf} offset:{o}
    ds_write_b32 v4, v{7+2*hf} offset:{o + 2*U_CP}
    ds_write_b16 v4, v{b} offset:{o + U_CP - 2}
    ds_write_b16 v4, v{a} offset:{o + U_CP}
    ds_write_b16_d16_hi v4, v{b} offset:{o + 3*U_CP - 2}
    ds_write_b16_d16_hi v4, v{a} offset:{o + 3*U_CP}""")
A("s_waitcnt lgkmcnt(0)\ns_barrier")
stamp()
Z = 156
A(f"""s_mul_i32 s7, s3, {HS_STR}
s_add_u32 s60, s7, {HS_OFF}
v_and_b32 v4, 7, v1
v_mul_u32_u24 v5, 80, v4
v_add_u32 v5, s60, v5
v_lshrrev_b32 v6, 3, v1
v_lshl_add_u32 v7, v6, 3, v5""")
for r in range(8):
    A(f"v_mov_b32 v{Z+2*r}, v{ACC+r}"); A(f"v_mov_b32 v{Z+2*r+1}, v{ACC+r+8}")
for r in range(8):
    A(f"v_mov_b32_dpp v{Z+2*r}, v{ACC+r+8} row_ror:8 row_mask:0xf bank_mask:0xc")
    A(f"v_mov_b32_dpp v{Z+2*r+1}, v{ACC+r} row_ror:8 row_mask:0xf bank_mask:0x3")
cur = Z
for r in range(1, 8):
    d = 10 + 2 * (r % 2); cfma(d, cur, LAM, Z + 2 * r, d); cur = d
A(f"ds_write_b64 v7, {P(cur)}")
for i in range(4): A(f"ds_read_b128 {Q(16+4*i)}, v5 offset:{16*i}")
INIT = 154
A(f"""v_mov_b32 v{INIT}, 0
v_mov_b32 v{INIT+1}, 0
s_lshl_b32 s7, s6, 15
s_add_u32 s96, s58, s7
s_addc_u32 s97, s59, 0
s_mov_b32 s98, 32768
s_mov_b32 s99, 0x20000
s_lshl_b32 s7, s5, 10
s_lshl_b32 s61, s3, 7
s_add_u32 s7, s7, s61
v_lshl_add_u32 v255, v4, 4, s7
v_mov_b32 v254, v152
s_waitcnt lgkmcnt(0)""")
cur = 16
for s in range(1, 8):
    A(f"v_cmp_eq_u32 vcc, {s}, v6")
    d = 10 + 2 * (s % 2); cfma(d, cur, L8, 16 + 2 * s, d)
    A(f"v_cndmask_b32 v{INIT}, v{INIT}, v{cur}, vcc"); A(f"v_cndmask_b32 v{INIT+1}, v{INIT+1}, v{cur+1}, vcc")
    cur = d
A(f"""v_mov_b32 v16, v{cur}
v_mov_b32 v17, {NON}
v_mov_b32 v18, v{cur+1}
v_mov_b32 v19, {NON}
s_mov_b64 exec, 0xff
buffer_store_dwordx4 {Q(16)}, v255, s[96:99], 0 offen sc1
s_mov_b64 exec, -1""")
A(f"""s_lshr_b32 s7, s3, 2
s_lshl_b32 s7, s7, 5
s_and_b32 s8, s3, 2
s_lshl_b32 s8, s8, 1
s_add_u32 s7, s7, s8
s_and_b32 s8, s3, 1
s_lshl_b32 s8, s8, 4
s_add_u32 s7, s7, s8
s_lshl_b32 s8, s6, 6
s_add_u32 s7, s7, s8
v_lshrrev_b32 v8, 2, v6
v_and_b32 v9, 3, v6
v_lshl_add_u32 v8, v8, 3, v9
v_add_u32 v8, s7, v8
v_mul_u32_u24 v8, 896, v8
v_xor_b32 v9, v4, v6
v_lshl_add_u32 v253, v9, 4, v8
s_mul_i32 s12, s3, 7168""")
def cdma():
    return [f"s_add_u32 m0, s12, {57344*comp + (1024-128)*k}\nglobal_load_lds_dwordx4 v253, {(BCre, BCim)[comp]} offset:{128*k}" for k in range(7) for comp in range(2)]
stamp()
CA = 136; FB = (8, 72)
A(f"""s_lshr_b32 s61, s3, 1
s_and_b32 s61, s61, 1
v_lshlrev_b32 v4, 3, v3
v_sub_u32 v4, v4, v2
v_add_u32 v4, 2031, v4
v_and_b32 v5, 1, v4
v_and_b32 v4, 0xfffe, v4
v_lshlrev_b32 v4, 1, v4
v_mul_u32_u24 v5, {U_CP}, v5
s_mul_i32 s7, s15, {2*U_CP}
s_add_u32 s7, s7, {U_OFF - 960 + 256}
s_lshl_b32 s61, s61, 8
s_sub_u32 s7, s7, s61
v_add3_u32 v4, v4, v5, s7
v_subrev_u32 v5, 1024, v4
v_subrev_u32 v6, 2048, v4
v_subrev_u32 v7, 3072, v4
s_mul_i32 s7, s15, {K_STR}
s_add_u32 s7, s7, {K_OFF + 448 - 192}
s_sub_u32 s7, s7, s61
v_lshlrev_b32 v152, 5, v2
v_lshl_add_u32 v152, v3, 4, v152
v_add_u32 v152, s7, v152""")
SETS = ((7, 6, 1, 0), (5, 4, 3, 2))
def conv_reads(st, k):
    fb = FB[k % 2]; nfr = max(SETS[st]) + 1; L = []
    for i in range(nfr):
        o = (704 - 64 * k - 512 * (i % 2)) // 4
        L.append(f"ds_read2_b32 {P(fb+4*i)}, v{4+i//2} offset0:{o} offset1:{o+1}")
        L.append(f"ds_read2_b32 {P(fb+4*i+2)}, v{4+i//2} offset0:{o+2} offset1:{o+3}")
        L.append(f"ds_read_b128 {Q(fb+32+4*i)}, v152 offset:{512*i + 192 - 64*k}")
    return L
def conv_mfmas(st, k):
    fb = FB[k % 2]; L = []
    for i in range(8):
        for ti, j in enumerate(SETS[st]):
            if i <= j:
                L.append(f"v_mfma_f32_16x16x32_bf16 {Q(CA+4*ti)}, {Q(fb+4*i)}, {Q(fb+32+4*(j-i))}, {'0' if (k == 0 and i == 0) else Q(CA+4*ti)}")
    return L
ncv = [0]
def conv_step(k, first=False, extra=()):
    n = ncv[0]; ncv[0] += 1
    A(f"s_bitcmp1_b32 s3, 0\ns_cbranch_scc1 LCB{n}")
    for st in range(2):
        if st == 1: A(f"LCB{n}:")
        if first:
            for r in conv_reads(st, k): A(r)
        A("s_waitcnt lgkmcnt(0)")
        rd = conv_reads(st, k + 1) if k < 3 else []
        ex = list(extra)
        for mi_, m in enumerate(conv_mfmas(st, k)):
            A(m)
            if ex and mi_ % 2 == 1: A(ex.pop(0))
            for r in rd[:2]: A(r)
            rd = rd[2:]
        assert not ex
        if st == 0: A(f"s_branch LCE{n}")
    A.flush()
    A(f"LCE{n}:")
T = 200
cd = cdma()
conv_step(0, first=True, extra=cd[:7])
conv_step(1, extra=cd[7:])
stamp()
A(f"""v_lshrrev_b32 v{T}, 3, v1
v_lshlrev_b32 v{T+1}, 12, v{T}
v_sub_u32 v{T+1}, v255, v{T+1}
v_mov_b32 v{T+2}, {NON}""")
for i in range(4):
    A(f"v_subrev_u32 v{T+20+i}, {1024*(i+1)}, v{T+1}")
    A(f"v_cmp_le_i32 vcc, 0, v{T+20+i}\nv_cndmask_b32 v{T+24+i}, 0, v{T+2}, vcc")
def iss_a():
    for i in range(4): A(f"buffer_load_dwordx4 {Q(T+4+4*i)}, v{T+20+i}, s[96:99], 0 offen sc1")
iss_a()
conv_step(2)
tagged(iss_a, chk([T + 5 + 2 * i for i in range(8)], T + 2, [T + 24 + i // 2 for i in range(8)]))
stamp()
for i in range(4): A(f"v_mov_b32 v{T+5+4*i}, v{T+6+4*i}")
cfma(T + 20, T + 16, L64, T + 12, T + 20); cfma(T + 22, T + 20, L64, T + 8, T + 22); cfma(T + 20, T + 22, L64, T + 4, T + 20)
cmul(T + 16, T + 20, L256S)
A(f"""v_and_b32 v{T+10}, 7, v1
v_mul_u32_u24 v{T+11}, 80, v{T+10}
v_add_u32 v{T+11}, s60, v{T+11}
v_lshl_add_u32 v{T+13}, v{T}, 3, v{T+11}
ds_write_b64 v{T+13}, {P(T+16)}""")
for i in range(4): A(f"ds_read_b128 {Q(T+20+4*i)}, v{T+11} offset:{16*i}")
A(f"""v_mul_u32_u24 v{T+14}, 144, v{T+10}
v_lshl_add_u32 v{T+14}, v{T}, 4, v{T+14}
v_add_u32 v{T+14}, s60, v{T+14}
v_lshrrev_b32 v{T+15}, 2, v2
v_mul_u32_u24 v{T+15}, 144, v{T+15}
v_lshl_add_u32 v{T+15}, v3, 5, v{T+15}
v_and_b32 v{T+16}, 3, v1
v_lshl_add_u32 v{T+15}, v{T+16}, 3, v{T+15}
v_add_u32 v{T+15}, s60, v{T+15}
s_lshl_b32 s7, s6, 3
s_add_u32 s7, s7, s3
s_lshl_b32 s7, s7, 8
s_mul_i32 s61, s5, {4*28*1024}
s_add_u32 s7, s7, s61
s_add_u32 s7, s7, {WS_H}
v_mul_u32_u24 v{T+16}, {28*1024}, v3
v_lshl_add_u32 v{T+16}, v2, 4, v{T+16}
v_add_u32 v{T+16}, s7, v{T+16}
v_add_u32 v{T+17}, {14*1024}, v{T+16}
s_waitcnt lgkmcnt(0)""")
for a, b in ((20, 22), (24, 26), (28, 30), (32, 34), (20, 24), (28, 32), (20, 28)):
    A(f"v_pk_add_f32 {P(T+a)}, {P(T+a)}, {P(T+b)}")
cfma(T + 18, T + 20, L8S, INIT, T + 18)
cur = T + 18
for r in range(8):
    cfma(Z + 2 * r, cur, LAM, Z + 2 * r, Z + 2 * r); cur = Z + 2 * r
    cmul(T + 20 + 2 * r, cur, CO2)
for r in range(4):
    A(f"v_cvt_pk_bf16_f32 v{T+36+r}, v{T+20+4*r}, v{T+22+4*r}")
    A(f"v_cvt_pk_bf16_f32 v{T+40+r}, -v{T+21+4*r}, -v{T+23+4*r}")
A(f"ds_write_b128 v{T+14}, {Q(T+36)}\nds_write_b128 v{T+14}, {Q(T+40)} offset:1152")
for comp in range(2):
    for hf in range(2):
        A(f"ds_read_b64_tr_b16 {P(T+44+4*comp+2*hf)}, v{T+15} offset:{1152*comp + 576*hf}")
A(f"""s_waitcnt lgkmcnt(0)
global_store_dwordx4 v{T+16}, {Q(T+44)}, {ws} sc1
global_store_dwordx4 v{T+17}, {Q(T+48)}, {ws} sc1""")
stamp()
conv_step(3)
A(f"""s_lshr_b32 s7, s3, 1
s_mul_i32 s7, s7, {PS}
s_add_u32 s7, s7, {PART}
v_mul_u32_u24 v4, 320, v3
v_lshl_add_u32 v4, v2, 4, v4
v_add_u32 v4, s7, v4
s_mul_i32 s32, s3, {4*PS}
s_add_u32 s32, s32, {PART}
v_lshrrev_b32 v5, 3, v1
v_lshlrev_b32 v5, 4, v5
v_bfe_u32 v6, v1, 1, 2
v_mul_u32_u24 v6, 320, v6
v_and_b32 v7, 1, v1
v_lshl_add_u32 v5, v7, 3, v5
v_add3_u32 v5, v5, v6, s32
v_mov_b32 v152, v254
s_barrier
s_bitcmp1_b32 s3, 0
s_cbranch_scc1 LPW1""")
for st in range(2):
    if st == 1: A("LPW1:")
    for ti, j in enumerate(SETS[st]): A(f"ds_write_b128 v4, {Q(CA+4*ti)} offset:{4*PS*j}")
    if st == 0: A("s_branch LPW2")
A(f"""LPW2:
s_lshl_b32 s7, s4, 14
s_lshl_b32 s61, s3, 11
s_add_u32 s7, s7, s61
s_add_u32 s7, s7, {WS_Y}
v_lshl_add_u32 v6, v1, 4, s7
s_mul_i32 s7, s5, {7*128}
s_add_u32 s7, s7, {WS_F}
v_min_u32 v7, 6, v1
v_lshl_add_u32 v7, v7, 7, s7
s_waitcnt vmcnt(0) lgkmcnt(0)
s_barrier
s_cmp_lg_u32 s3, 0
s_cbranch_scc1 LNF2
s_lshl_b32 s7, s4, 7
s_add_u32 s7, s7, {WS_F}
v_lshl_add_u32 v40, v1, 2, s7
v_mov_b32 v41, {NON}
s_mov_b32 exec_hi, 0
global_store_dword v40, v41, {ws} sc1
s_mov_b64 exec, -1
LNF2:""")
stamp()
for hf in range(2):
    for i in range(4): A(f"ds_read_b64 {P(8+8*hf+2*i)}, v5 offset:{PS*i + 128*hf}")
A(f"v_mov_b32 v25, {NON}\nv_mov_b32 v27, {NON}\nv_mov_b32 v29, {NON}\nv_mov_b32 v31, {NON}\ns_waitcnt lgkmcnt(0)")
for hf in range(2):
    b = 8 + 8 * hf
    A(f"""v_pk_add_f32 {P(b)}, {P(b)}, {P(b+2)}
    v_pk_add_f32 {P(b+4)}, {P(b+4)}, {P(b+6)}
    v_cvt_pk_bf16_f32 v{24+4*hf}, v{b}, v{b+4}
    v_cvt_pk_bf16_f32 v{26+4*hf}, v{b+1}, v{b+5}
    global_store_dwordx4 v6, {Q(24+4*hf)}, {ws} offset:{1024*hf} sc1""")
def iss_f(): A(f"global_load_dword v8, v7, {ws} sc1")
iss_f()
A(f"""s_lshl_b32 s7, s5, 2
s_add_u32 s7, s7, s100
s_mul_i32 s7, s7, 28
s_mul_i32 s61, s101, 14
s_add_u32 s7, s7, s61
s_lshl_b32 s7, s7, 10
s_add_u32 s7, s7, {WS_H + 4096}
v_lshl_add_u32 v10, v1, 4, s7
v_add_u32 v11, 8192, v10
s_mul_i32 s7, s101, 57344
v_add_u32 v152, s7, v152
v_xor_b32 v153, 64, v152""")
def rd2(n):
    ks, q = n // 4, n % 4
    A(f"ds_read_b128 {Q(32+4*(n%16))}, v{152+ks%2} offset:{q*14336+(ks//2)*1024}")
for n in range(12): rd2(n)
tagged(iss_f, chk([8], 12))
stamp()
for k in range(14):
    A(f"global_load_dwordx4 {Q(200+4*k)}, v{10 + k//8}, {ws} offset:{1024*(k%8) - 4096} sc1")
A(f"""s_lshr_b32 s7, s35, 1
s_lshl_b32 s7, s7, 14
s_add_u32 s7, s7, {WS_Y}
v_add_u32 v8, s34, v2
v_lshlrev_b32 v6, 3, v8
v_add_u32 v7, {WS_G}, v6
v_lshl_add_u32 v6, v3, 16, v6
v_add_u32 v6, s7, v6
v_add_u32 v10, 16384, v6
v_add_u32 v11, 32768, v6
v_add_u32 v12, 49152, v6""")
def iss_y():
    A(f"global_load_dwordx2 {P(14)}, v7, {ws} sc1")
    for i, r in enumerate((6, 10, 11, 12)): A(f"global_load_dwordx2 {P(16+2*i)}, v{r}, {ws} sc1")
iss_y()
for n in range(56):
    ks, q = n // 4, n % 4
    if q == 0:
        left = min(n + 12, 56) - (n + 4)
        A(f"s_waitcnt vmcnt({18-ks}) lgkmcnt({left})")
    A(f"v_mfma_f32_16x16x32_bf16 {Q(ACC+4*q)}, {Q(32+4*(n%16))}, {Q(200+4*ks)}, {'0' if ks == 0 else Q(ACC+4*q)}")
    if n + 12 < 56: rd2(n + 12)
stamp()
A(f"""v_lshl_add_u32 v5, v1, 4, s32
s_xor_b32 s7, s3, 4
s_mul_i32 s7, s7, {4*PS}
s_add_u32 s7, s7, {PART}
v_lshl_add_u32 v4, v1, 4, s7
s_cmp_eq_u32 s101, 0
s_cbranch_scc1 LE0
ds_write_b128 v5, {Q(ACC)}
ds_write_b128 v5, {Q(ACC+4)} offset:1024
s_branch LE1
LE0:
ds_write_b128 v5, {Q(ACC+8)}
ds_write_b128 v5, {Q(ACC+12)} offset:1024""")
for i in range(8): A(f"v_mov_b32 v{ACC+8+i}, v{ACC+i}")
A("LE1:")
tagged(iss_y, chk([15, 17, 19, 21, 23], 24))
stamp()
A(f"""v_sub_f32 v15, 1.0, v14
v_cvt_pk_bf16_f32 v15, v15, v15
v_lshlrev_b32 v15, 16, v15""")
for i in range(4):
    A(f"v_lshlrev_b32 v{28+2*i}, 16, v{16+2*i}\nv_and_b32 v{29+2*i}, 0xffff0000, v{16+2*i}")
for i in range(4): A(f"v_pk_add_f32 {P(28+2*i)}, {P(28+2*i)}, {P(184+2*i)}")
for i in range(4): A(f"v_cvt_pk_bf16_f32 v{16+i}, v{28+2*i}, v{29+2*i}")
A(f"s_waitcnt lgkmcnt(0)\ns_barrier\nds_read_b128 {Q(20)}, v4\nds_read_b128 {Q(24)}, v4 offset:1024")
for i in range(4):
    A(f"v_lshlrev_b32 v{28+2*i}, 16, v{16+i}\nv_and_b32 v{29+2*i}, 0xffff0000, v{16+i}")
for i in range(4): A(f"v_pk_mul_f32 {P(28+2*i)}, {P(28+2*i)}, {P(14)} op_sel:[0,0] op_sel_hi:[1,0]")
for i in range(4): A(f"v_cvt_pk_bf16_f32 v{16+i}, v{28+2*i}, v{29+2*i}")
for i in range(4):
    A(f"v_lshlrev_b32 v{28+2*i}, 16, v{16+i}\nv_and_b32 v{29+2*i}, 0xffff0000, v{16+i}")
for i in range(4): A(f"v_pk_add_f32 {P(ACC+8+2*i)}, {P(ACC+8+2*i)}, {P(192+2*i)}")
A(f"""v_mul_u32_u24 v6, 144, v2
v_lshl_add_u32 v6, v3, 5, v6
v_add_u32 v6, s32, v6
v_lshrrev_b32 v7, 3, v1
v_and_b32 v9, 7, v1
v_mul_u32_u24 v10, 144, v7
v_lshl_add_u32 v10, v9, 4, v10
v_add_u32 v10, s32, v10
v_add_u32 v8, s34, v7
v_mul_u32_u24 v8, 1792, v8
v_lshl_add_u32 v8, v9, 4, v8
s_lshl_b32 s7, s35, 2
v_add_u32 v8, s7, v8
v_add_u32 v9, {8*1792}, v8
s_waitcnt lgkmcnt(0)""")
for i in range(4): A(f"v_pk_add_f32 {P(20+2*i)}, {P(20+2*i)}, {P(ACC+8+2*i)}")
for i in range(4): A(f"v_pk_fma_f32 {P(28+2*i)}, {P(20+2*i)}, {P(14)}, {P(28+2*i)} op_sel:[0,1,0] op_sel_hi:[1,1,1]")
A(f"""ds_write_b128 v6, {Q(28)} offset:2048
ds_write_b128 v6, {Q(32)} offset:2064
ds_read_b128 {Q(36)}, v10 offset:2048
ds_read_b128 {Q(40)}, v10 offset:{2048 + 8*144}
s_waitcnt lgkmcnt(1)
global_store_dwordx4 v8, {Q(36)}, {out_}
s_waitcnt lgkmcnt(0)
global_store_dwordx4 v9, {Q(40)}, {out_}""")
if PROF:
    A("s_waitcnt vmcnt(0)"); stamp()
    A(f"""s_memrealtime s[60:61]
    s_waitcnt lgkmcnt(0)
    s_lshl_b32 s7, s4, 3
    s_add_u32 s7, s7, s3
    s_lshl_b32 s7, s7, 7
    s_add_u32 s7, s7, {WS_P}
    v_mov_b32 v4, s7
    s_mov_b64 exec, 1""")
    for i, r in enumerate([62, 60] + [64 + 2 * k for k in range(nstamp[0])]):
        A(f"v_mov_b32 v5, s{r}\nglobal_store_dword v4, v5, {ws} offset:{4*i}")
A("s_endpgm")
A(f"""LGATE:
s_and_b32 s7, s2, 7
s_lshl_b32 s7, s7, 2
s_lshr_b32 s8, s2, 3
s_add_u32 s5, s7, s8
s_add_u32 s4, s5, 224
s_lshl_b32 s7, s5, 6
s_lshl_b32 s8, s3, 3
s_add_u32 s9, s7, s8
s_mul_i32 s7, s9, 896
v_lshlrev_b32 v4, 4, v1
v_add_u32 v5, s7, v4
v_add_u32 v6, 3584, v5""")
for i in range(16): A(f"v_mov_b32 v{60+i}, 0")
A(f"""s_waitcnt lgkmcnt(0)
s_load_dword s11, {ws}, s12
s_lshr_b32 s7, s2, 3
s_lshl_b32 s7, s7, 3
s_add_u32 s7, s7, s3
s_mul_i32 s7, s7, 12544
v_add_u32 v7, s7, v4""")
for k in range(13):
    if k == 12: A("s_mov_b64 exec, 0xffff")
    if k and k % 4 == 0: A("v_add_u32 v7, 4096, v7")
    A(f"global_load_dwordx4 {Q(80+8*k)}, v7, {BCre} offset:{1024*(k%4)}\nglobal_load_dwordx4 {Q(84+8*k)}, v7, {BCim} offset:{1024*(k%4)}")
A(f"""s_mov_b32 exec_lo, -1
s_mov_b32 exec_hi, 0xffffff
global_load_dwordx4 {Q(8)}, v4, {gw}""")
for i in range(8): A(f"global_load_dwordx4 {Q(12+4*i)}, v{5+i//4}, {u_} offset:{896*(i%4)}")
A("s_waitcnt vmcnt(8)")
for k in range(4): A(f"v_lshlrev_b32 v{44+2*k}, 16, v{8+k}\nv_and_b32 v{45+2*k}, 0xffff0000, v{8+k}")
for i in range(8):
    A(f"s_waitcnt vmcnt({7-i})")
    for k in range(4): A(f"v_lshlrev_b32 v{52+2*k}, 16, v{12+4*i+k}\nv_and_b32 v{53+2*k}, 0xffff0000, v{12+4*i+k}")
    for k in range(4): A(f"v_pk_mul_f32 {P(52+2*k)}, {P(52+2*k)}, {P(44+2*k)}")
    for k in range(4): A(f"v_cvt_pk_bf16_f32 v{8+k}, v{52+2*k}, v{53+2*k}")
    for k in range(4): A(f"v_lshlrev_b32 v{52+2*k}, 16, v{8+k}\nv_and_b32 v{53+2*k}, 0xffff0000, v{8+k}")
    for k in range(4): A(f"v_pk_add_f32 {P(60+2*i)}, {P(60+2*i)}, {P(52+2*k)}")
A("s_mov_b64 exec, -1")
for i in range(8): A(f"v_add_f32 v{60+2*i}, v{60+2*i}, v{61+2*i}")
for sh in ("row_shr:1 row_mask:0xf", "row_shr:2 row_mask:0xf", "row_shr:4 row_mask:0xf", "row_shr:8 row_mask:0xf", "row_bcast:15 row_mask:0xa", "row_bcast:31 row_mask:0xc"):
    for i in range(8): A(f"v_add_f32_dpp v{60+2*i}, v{60+2*i}, v{60+2*i} {sh} bank_mask:0xf")
for i in range(8): A(f"v_readlane_b32 s{64+i}, v{60+2*i}, 63")
for i in range(8): A(f"v_writelane_b32 v8, s{64+i}, {i}")
A(f"""v_cvt_pk_bf16_f32 v8, v8, v8
v_lshlrev_b32 v8, 16, v8
v_mul_f32 v8, {(LOG2E | 0x80000000):#x}, v8
v_exp_f32 v8, v8
v_add_f32 v8, 1.0, v8
v_rcp_f32 v8, v8
s_waitcnt lgkmcnt(0)
s_add_u32 {NON}, s11, 0x9E3779B9
s_lshl_b32 s7, s9, 3
s_add_u32 s7, s7, {WS_G}
v_cvt_pk_bf16_f32 v8, v8, v8
v_lshlrev_b32 v8, 16, v8
v_mov_b32 v9, {NON}
v_lshl_add_u32 v10, v1, 3, s7
s_mov_b64 exec, 0xff
global_store_dwordx2 v10, {P(8)}, {ws} sc1
s_mov_b64 exec, -1
s_cmp_lg_u32 s2, 0
s_cbranch_scc1 LEND
v_min_u32 v4, 479, v0
v_lshlrev_b32 v5, 7, v4
v_add_u32 v5, {WS_F}, v5
v_lshlrev_b32 v6, 6, v4
v_add_u32 v6, {WS_G + 4 - 224*64}, v6
v_cmp_gt_u32 vcc, 224, v4
v_cndmask_b32 v5, v6, v5, vcc""")
def iss_e(): A(f"s_sleep 32\nglobal_load_dword v8, v5, {ws} sc1")
iss_e()
tagged(iss_e, chk([8], 12))
A(f"""s_barrier
s_cmp_lg_u32 s3, 0
s_cbranch_scc1 LEND
v_mov_b32 v4, {WS_E}
s_mov_b64 exec, 1
global_store_dword v4, v9, {ws} sc1""")
A("LEND:\ns_endpgm")
hdr = open("cdna_kernels/%s.s.ref" % NAME).read().split("; Override launch")[0]
print(hdr + f"""; @launch grid=(256,1,1) block=(512,1,1) lds=163840
.amdgcn_target "amdgcn-amd-amdhsa--gfx950"
.text
.globl {NAME}_kernel
.p2align 8
.type {NAME}_kernel,@function
{NAME}_kernel:
""" + A.text() + f""".section .rodata,"a"
.p2align 6
.amdhsa_kernel {NAME}_kernel
  .amdhsa_next_free_vgpr 256
  .amdhsa_next_free_sgpr 102
  .amdhsa_accum_offset 256
  .amdhsa_group_segment_fixed_size 0
  .amdhsa_kernarg_size 176
  .amdhsa_user_sgpr_count 2
  .amdhsa_user_sgpr_kernarg_segment_ptr 1
  .amdhsa_system_sgpr_workgroup_id_x 1
.end_amdhsa_kernel""")
print("nops inserted:", A.nops, "stamps:", nstamp[0], file=sys.stderr)
```

```python
import sys
from asmlib import Asm
PROF = "prof" in sys.argv
NAME = "gated_mix__ssm_conv_s4__ssm_conv_s5__prompt"
A = Asm()
G_OFF, G_STR, G_ROW = 57344, 4608, 288
BR_OFF = 94208
U_OFF, U_CP = 114688, 4288
K_OFF, K_STR = 131840, 4672
HS_OFF, HS_STR = 141184, 2304
CNT = 159744
PART = 114688
WS_H, WS_Y, WS_U, WS_G, WS_F, WS_E, WS_P = 0x40000, 0x400000, 0x800000, 0xC00000, 0xC10000, 0xC20000, 0xD00000
NON = 's31'
PS = 1280
LOG2E, INV2PI = 0x3fb8aa3b, 0x3e22f983
def fl(x):
    import struct; return "0x%08x" % struct.unpack("<I", struct.pack("<f", x))[0]
def P(r): return "v[%d:%d]" % (r, r + 1)
def Q(r): return "v[%d:%d]" % (r, r + 3)
u_, Are, Aim, Bre, Bim, Cre, Cim, Aldt, ADs, Lre, Lim, BBre, BBim, BCre, BCim, Bldt, BDs, gw, out_, dbg, ws = [
    "s[%d:%d]" % (i, i + 1) for i in (16, 18, 20, 22, 24, 26, 28, 30, 32, 36, 38, 40, 42, 44, 46, 48, 50, 52, 54, 56, 58)]
nstamp = [0]
import os
DET = os.environ.get("DET", "")
SKIP = [int(os.environ.get("SKIP", 0))]
def stamp(tag=None):
    if tag is None and nstamp[0] == 1 and SKIP[0] > 0:
        SKIP[0] -= 1; return
    if PROF and (tag is None or tag == DET) and nstamp[0] < 16:
        A("s_memtime s[%d:%d]" % (64 + 2 * nstamp[0], 65 + 2 * nstamp[0])); nstamp[0] += 1
def cmul(d, a, b):
    A(f"v_pk_mul_f32 {P(d)}, {P(a)}, {P(b)} op_sel:[0,0] op_sel_hi:[0,1]")
    A(f"v_pk_fma_f32 {P(d)}, {P(a)}, {P(b)}, {P(d)} op_sel:[1,1,0] op_sel_hi:[1,0,1] neg_lo:[1,0,0]")
def cfma(d, a, b, c, t):
    A(f"v_pk_fma_f32 {P(t)}, {P(a)}, {P(b)}, {P(c)} op_sel:[0,0,0] op_sel_hi:[0,1,1]")
    A(f"v_pk_fma_f32 {P(d)}, {P(a)}, {P(b)}, {P(t)} op_sel:[1,1,0] op_sel_hi:[1,0,1] neg_lo:[1,0,0]")
def cexp(d, ar, rev, k, t):
    A(f"""v_mul_f32 v{t}, {k}, v{ar}
    v_mul_f32 v{t+1}, {k}, v{rev}
    v_exp_f32 v{t}, v{t}
    v_rndne_f32 v{t+2}, v{t+1}
    v_sub_f32 v{t+1}, v{t+1}, v{t+2}
    v_cos_f32 v{d}, v{t+1}
    v_sin_f32 v{d+1}, v{t+1}
    v_pk_mul_f32 {P(d)}, {P(d)}, {P(t)} op_sel:[0,0] op_sel_hi:[1,0]""")
def dt_from_log(d, src):
    A(f"""v_mul_f32 v{d}, {LOG2E:#x}, v{src}
    v_exp_f32 v{d}, v{d}
    v_cvt_pk_bf16_f32 v{d}, v{d}, v{d}
    v_lshlrev_b32 v{d}, 16, v{d}""")

ntag = [0]
def tagged(issue, check, waitn=0):
    n = ntag[0]; ntag[0] += 1
    A(f"s_mov_b32 s7, 0\ns_waitcnt vmcnt({waitn})\nLTG{n}:")
    check()
    A(f"""s_cbranch_vccz LTD{n}
    s_add_u32 s7, s7, 1
    s_cmp_gt_u32 s7, 0x40000
    s_cbranch_scc1 LTD{n}
    s_sleep 2""")
    issue()
    A(f"s_waitcnt vmcnt(0)\ns_branch LTG{n}\nLTD{n}:")
def chk(tags, t, exp=None):
    def f():
        for i, r in enumerate(tags):
            e = NON if exp is None else f"v{exp[i]}"
            if i == 0: A(f"v_xor_b32 v{t}, {e}, v{r}")
            else: A(f"v_xor_b32 v{t+1}, {e}, v{r}\nv_or_b32 v{t}, v{t}, v{t+1}")
        A(f"v_cmp_ne_u32 vcc, 0, v{t}")
    return f
bg = []
def bgemit(n=1):
    for _ in range(n):
        if bg: A(bg.pop(0))
A(f"""s_cmp_ge_u32 s2, 256
s_cbranch_scc1 LEND
s_load_dwordx4 s[56:59], s[0:1], 160
s_load_dwordx16 s[16:31], s[0:1], 0
s_load_dwordx16 s[32:47], s[0:1], 64
s_load_dwordx8 s[48:55], s[0:1], 128""")
if PROF: A("s_memrealtime s[62:63]")
stamp()
A(f"""v_lshrrev_b32 v4, 6, v0
v_and_b32 v1, 63, v0
v_readfirstlane_b32 s3, v4
v_and_b32 v2, 15, v0
v_lshrrev_b32 v3, 4, v1
s_mov_b32 s12, {WS_E}
s_cmp_lt_u32 s2, 32
s_cbranch_scc1 LGATE
s_sub_u32 s7, s2, 32
s_and_b32 s8, s7, 7
s_lshr_b32 s7, s7, 3
s_mul_i32 s4, s8, 28
s_add_u32 s4, s4, s7
s_mul_i32 s5, s4, 9363
s_lshr_b32 s5, s5, 16
s_mul_i32 s6, s5, 7
s_sub_u32 s6, s4, s6
s_lshl_b32 s7, s4, 10
v_lshl_add_u32 v4, v0, 1, s7""")
for i in range(6): A(f"v_mov_b32 v{10+i}, 0")
for i in range(3): A(f"v_mov_b32 v{172+i}, 0")
A(f"v_mov_b32 v18, {CNT}\nds_write_b64 v18, {P(10)}")
A(f"""v_lshrrev_b32 v16, 3, v1
v_and_b32 v9, 7, v1
v_xor_b32 v17, v9, v16
v_lshlrev_b32 v17, 4, v17
v_lshrrev_b32 v5, 2, v16
v_and_b32 v6, 3, v16
v_lshl_add_u32 v5, v5, 4, v6
s_and_b32 s7, s3, 1
s_lshl_b32 s7, s7, 5
s_lshr_b32 s8, s3, 1
s_lshl_b32 s8, s8, 2
s_add_u32 s7, s7, s8
s_lshl_b32 s8, s5, 6
s_add_u32 s7, s7, s8
v_add_u32 v5, s7, v5
s_movk_i32 s9, 896
v_mad_u32_u24 v148, v5, s9, v17
s_lshl_b32 s7, s6, 6
s_lshl_b32 s8, s3, 3
s_add_u32 s7, s7, s8
v_add_u32 v5, s7, v16
v_mad_u32_u24 v149, v5, s9, v17
v_add_u32 v9, s7, v9
v_lshlrev_b32 v9, 1, v9
s_lshl_b32 s7, s4, 2
s_waitcnt lgkmcnt(0)
s_load_dword s10, {Aldt}, s7
s_load_dword s11, {ws}, s12""")
for i, b in enumerate((Are, Aim, Bre, Bim, Cre, Cim)): A(f"global_load_short_d16_hi v{10+i}, v4, {b}")
for i, b in enumerate((Lre, Lim, Bldt)): A(f"global_load_short_d16_hi v{172+i}, v9, {b}")
A("s_barrier")
A(f"""s_add_u32 s7, s3, s6
s_and_b32 s100, s7, 3
s_lshr_b32 s101, s7, 2
s_and_b32 s101, s101, 1
s_lshl_b32 s7, s100, 4
s_lshl_b32 s8, s5, 6
s_add_u32 s34, s7, s8
s_lshl_b32 s7, s101, 5
s_lshl_b32 s8, s6, 6
s_add_u32 s35, s7, s8
s_mul_i32 s13, s3, {G_STR}
s_mul_i32 s14, s3, 7168
s_lshl_b32 s15, s3, 13
s_add_u32 s15, s15, {BR_OFF}
s_and_b32 s60, s5, 3
s_cmp_eq_u32 s60, 3
s_cselect_b32 s61, 0, s60
s_mov_b32 s12, s6""")
def ld_x():
    return f"""s_lshl_b32 s7, s12, 7
    v_add_u32 v150, s7, v148
    s_lshl_b32 s7, s12, 10
    s_add_u32 m0, s7, s14
    s_add_u32 s12, s12, 1
    global_load_lds_dwordx4 v150, {u_}
    s_add_u32 m0, m0, {4*7168}
    v_add_u32 v150, 7168, v150
    global_load_lds_dwordx4 v150, {u_}
    s_mov_b32 m0, s13
    s_cmp_eq_u32 s12, 7
    s_cselect_b32 s12, 0, s12"""
def ld_b1():
    return f"""s_lshl_b32 s7, s60, 7
    v_add_u32 v150, s7, v149
    s_lshl_b32 s7, s60, 11
    s_add_u32 m0, s7, s15
    s_add_u32 s60, s60, 1
    global_load_lds_dwordx4 v150, {BBre}
    s_add_u32 m0, m0, 1024
    s_and_b32 s60, s60, 3
    global_load_lds_dwordx4 v150, {BBim}
    s_mov_b32 m0, s13"""
def ld_b2(i):
    return f"""s_lshl_b32 s7, s61, 7
    v_add_u32 v150, s7, v149
    s_add_u32 s61, s61, 1
    global_load_dwordx4 {Q(232+8*i)}, v150, {BBre} offset:512
    global_load_dwordx4 {Q(236+8*i)}, v150, {BBim} offset:512
    s_cmp_eq_u32 s61, 3
    s_cselect_b32 s61, 0, s61"""
A("s_cmp_ge_u32 s3, 4\ns_cbranch_scc1 LI0")
A(ld_x()); A.flush(); A("LI0:")
A(ld_b1()); A(ld_b2(0))
NE = 0
A(f"""s_waitcnt lgkmcnt(0)
s_add_u32 {NON}, s11, 0x9E3779B9
s_lshl_b32 s7, s10, 16
s_and_b32 s8, s10, 0xffff0000
s_cmp_lt_u32 s3, 4
s_cselect_b32 s7, s7, s8
v_mov_b32 v4, s7""")
dt_from_log(4, 4)
A(f"""v_lshlrev_b32 v7, 4, v3
v_add_u32 v7, s13, v7
v_add_u32 v7, {G_OFF}, v7
s_movk_i32 s7, {G_ROW}
v_mad_u32_u24 v5, v2, s7, v7
v_min_u32 v6, 4, v2
v_mad_u32_u24 v6, v6, s7, v7
s_setprio 2
s_waitcnt vmcnt(6)
s_cmp_lt_u32 s3, 4
s_cbranch_scc1 LI3
s_waitcnt vmcnt(4)""")
A("LI3:")
stamp()
A(f"""v_mul_f32 v10, v4, v10
v_mul_f32 v11, v4, v11
v_mul_f32 v10, {LOG2E:#x}, v10
v_mul_f32 v11, {INV2PI:#x}, v11
v_pk_mul_f32 {P(12)}, {P(12)}, {P(4)} op_sel:[0,0] op_sel_hi:[1,0]""")
E = {k: 20 + 2 * i for i, k in enumerate((1, 2, 3, 4, 6, 8, 256, 512, 768, 1024))}
TA, TB, X0, X1 = 40, 42, 44, 46
cv = [48, 49, 50, 51]; ci = [0]
def put(row, r, neg):
    c = cv[ci[0] % 4]; ci[0] += 1
    A(f"v_cvt_pk_bf16_f32 v{c}, v{r}, {'-' if neg else ''}v{r+1}")
    A(f"ds_write_addtid_b32 v{c} offset:{G_OFF + G_ROW*(row%16)}")
    if ci[0] % 4 == 0: bgemit()
cexp(E[1], 10, 11, "1.0", 16)
cexp(E[256], 10, 11, fl(256.0), 16)
stamp("k")
cexp(E[8], 10, 11, fl(8.0), 16)
cmul(X0, 12, 14)
A("v_mov_b32 v8, 0x3f80"); A(f"ds_write_addtid_b32 v8 offset:{G_OFF}")
put(1, E[1], 1); put(8, E[256], 1)
cmul(E[2], E[1], E[1]); cmul(E[512], E[256], E[256]); put(2, E[2], 1); put(12, E[512], 1)
cmul(E[3], E[2], E[1]); cmul(E[4], E[2], E[2]); put(3, E[3], 1); put(4, E[4], 1)
cmul(E[768], E[512], E[256]); cmul(E[6], E[4], E[2]); put(14, E[768], 1); put(6, E[6], 1)
YF, XF, DT = 52, 84, 116
for (r1, a1, b1), (r2, a2, b2) in (((5, 4, 1), (7, 4, 3)), ((9, 256, 2), (10, 256, 4)), ((11, 256, 6), (13, 512, 4))):
    cmul(TA, E[a1], E[b1]); cmul(TB, E[a2], E[b2]); put(r1, TA, 1); put(r2, TB, 1)
cmul(TA, E[768], E[4]); cmul(E[1024], E[512], E[512]); put(15, TA, 1)
for ks in range(4): A(f"ds_read_b128 {Q(YF+4*ks)}, v5 offset:{64*ks}")
put(16, E[1024], 1)
for (r1, a1, b1), (r2, a2, b2) in (((17, 1024, 256), (18, 1024, 512)), ((19, 1024, 768), (20, 1024, 1024))):
    cmul(TA, E[a1], E[b1]); cmul(TB, E[a2], E[b2]); put(r1, TA, 1); put(r2, TB, 1)
for ks in range(4): A(f"ds_read_b128 {Q(YF+16+4*ks)}, v6 offset:{64*ks}")
stamp("k")
E16 = E[2]
cmul(X1, X0, E[8]); cmul(E16, E[8], E[8])
cur = [X0, X1]; alt = [TA, TB]
for at in range(2):
    for a in range(0, 16, 2):
        put(a, cur[0], 0); put(a + 1, cur[1], 0)
        if not (at == 1 and a == 14):
            cmul(alt[0], cur[0], E16); cmul(alt[1], cur[1], E16)
            cur, alt = alt, cur
        if at == 1 and a == 4:
            A("s_waitcnt lgkmcnt(6)")
            for jt in range(2):
                for ks in range(4):
                    A(f"v_mfma_f32_16x16x32_bf16 {Q(DT+8*jt)}, {Q(YF+16*jt+4*ks)}, {Q(XF+4*ks)}, {'0' if ks == 0 else Q(DT+8*jt)}")
    stamp("k")
    for ks in range(4): A(f"ds_read_b128 {Q(XF+16*at+4*ks)}, v5 offset:{64*ks}")
assert not bg
A(f"""v_max_u32 v8, 1, v3
v_lshrrev_b32 v8, v8, 64
v_mul_u32_u24 v9, v8, v2
v_lshlrev_b32 v10, 4, v3
v_lshlrev_b32 v11, 9, v3
v_cmp_gt_u32 vcc, 2, v3
v_cndmask_b32 v10, v11, v10, vcc
v_add3_u32 v9, v9, v10, s13
v_cmp_eq_u32 vcc, 3, v3
v_mov_b32 v11, 256
v_cndmask_b32 v11, 8, v11, vcc
v_add_u32 v10, v9, v11
v_lshl_add_u32 v11, v8, 4, v9
v_lshl_add_u32 v12, v8, 4, v10
v_lshlrev_b32 v13, 9, v3
v_lshl_add_u32 v13, v2, 2, v13
v_add_u32 v13, s13, v13
v_add_u32 v13, {G_OFF + 2048}, v13
s_waitcnt lgkmcnt(0)""")
for jt in range(2):
    for ks in range(4):
        A(f"v_mfma_f32_16x16x32_bf16 {Q(DT+8*jt+4)}, {Q(YF+16*jt+4*ks)}, {Q(XF+16+4*ks)}, {'0' if ks == 0 else Q(DT+8*jt+4)}")
for at in range(2):
    A(f"ds_write_b64 v{9+2*at}, {P(DT+4*at)} offset:{G_OFF}")
    A(f"ds_write_b64 v{10+2*at}, {P(DT+4*at+2)} offset:{G_OFF}")
for at in range(2):
    A(f"ds_write2_b32 v13, v{DT+8+4*at}, v{DT+9+4*at} offset0:{16*at} offset1:{32+16*at}")
    A(f"ds_write2_b32 v13, v{DT+10+4*at}, v{DT+11+4*at} offset0:{64+16*at} offset1:{96+16*at}")
stamp()
A(f"""s_lshl_b32 s7, s4, 14
s_lshl_b32 s8, s3, 11
s_add_u32 s7, s7, s8
s_add_u32 s7, s7, {WS_U}
v_lshl_add_u32 v151, v1, 4, s7""")
def iss_u():
    A(f"global_load_dwordx4 {Q(140)}, v151, {ws} sc1\nglobal_load_dwordx4 {Q(144)}, v151, {ws} offset:1024 sc1")
THR = int(os.environ.get("THR", 8))
A("s_cmp_ge_u32 s3, 4\ns_cbranch_scc1 LI2\ns_setprio 0")
for i in range(6): A(f"s_waitcnt vmcnt({THR})"); A(ld_x())
A.flush(); A("LI2:")
for r in (ld_b1(), ld_b1(), ld_b2(1), ld_b1(), ld_b2(2)): A(f"s_waitcnt vmcnt({THR})"); A(r)
stamp("k")
A(f"""s_cmp_ge_u32 s3, 4
s_cbranch_scc1 LI5
v_and_b32 v4, 4, v1
v_and_b32 v5, 1, v1
v_lshl_add_u32 v4, v5, 1, v4
v_lshrrev_b32 v5, 3, v1
v_xor_b32 v6, v5, v4
v_lshlrev_b32 v6, 4, v6
v_lshl_add_u32 v6, v4, 7, v6
v_bfe_u32 v7, v1, 1, 1
v_mul_u32_u24 v7, {4*7168}, v7
s_lshl_b32 s7, s6, 10
s_add_u32 s7, s7, s14
v_add3_u32 v6, v6, v7, s7
v_xor_b32 v7, 16, v6
ds_read_b128 {Q(20)}, v6
ds_read_b128 {Q(24)}, v7 offset:128
s_lshl_b32 s7, s6, 19
s_lshl_b32 s8, s5, 2
s_add_u32 s8, s8, s3
s_lshl_b32 s8, s8, 7
s_add_u32 s7, s7, s8
s_add_u32 s7, s7, {WS_U}
v_and_b32 v4, 7, v1
v_lshl_add_u32 v4, v4, 4, s7
v_lshl_add_u32 v4, v5, 16, v4""")
for k in range(4): A(f"v_mov_b32 v{29+4*k}, {NON}\nv_mov_b32 v{31+4*k}, {NON}\nv_add_u32 v{8+k}, {16384*k}, v4")
A("s_waitcnt lgkmcnt(0)")
for k in range(4): A(f"v_mov_b32 v{28+4*k}, v{20+k}\nv_mov_b32 v{30+4*k}, v{24+k}\nglobal_store_dwordx4 v{8+k}, {Q(28+4*k)}, {ws} sc1")
A.flush(); A("LI5:")
LAM, L8, L64, L256S, L8S, CO2 = 172, 174, 176, 178, 180, 182
dt_from_log(4, 174)
A(f"""v_mov_b32 v6, v172
v_mov_b32 v7, v173
v_mul_f32 v10, v4, v172
v_mul_f32 v11, v4, v173
v_mul_f32 v10, {LOG2E:#x}, v10
v_mul_f32 v11, {INV2PI:#x}, v11
v_lshrrev_b32 v8, 3, v1
v_cvt_f32_u32 v8, v8
v_mul_f32 v9, {fl(256.0)}, v8
v_mul_f32 v8, {fl(8.0)}, v8""")
cexp(LAM, 10, 11, "1.0", 16); cexp(L8, 10, 11, fl(8.0), 16); cexp(L64, 10, 11, fl(64.0), 16)
cexp(L256S, 10, 11, "v9", 16); cexp(L8S, 10, 11, "v8", 16)
A(f"""v_mul_f32 v8, v6, v6
v_fmac_f32 v8, v7, v7
v_rcp_f32 v8, v8
v_add_f32 v12, -1.0, v{LAM}
v_mov_b32 v13, v{LAM+1}
v_add_f32 v8, v8, v8
v_mul_f32 v6, v6, v8
v_mul_f32 v7, -v7, v8""")
cmul(CO2, 12, 6)
def epi_pre():
    for i in range(4):
        A(f"""v_lshlrev_b32 v{96+2*i}, 16, v{184+i}
    v_and_b32 v{97+2*i}, 0xffff0000, v{184+i}
    v_lshlrev_b32 v{104+2*i}, 16, v{188+i}
    v_and_b32 v{105+2*i}, 0xffff0000, v{188+i}
    v_lshlrev_b32 v{112+2*i}, 16, v{192+i}
    v_and_b32 v{113+2*i}, 0xffff0000, v{192+i}""")
    for i in range(4):
        A(f"""v_pk_mul_f32 {P(104+2*i)}, {P(104+2*i)}, {P(96+2*i)}
    v_pk_mul_f32 {P(112+2*i)}, {P(112+2*i)}, {P(96+2*i)}
    v_cvt_pk_bf16_f32 v{104+2*i}, v{104+2*i}, v{105+2*i}
    v_cvt_pk_bf16_f32 v{112+2*i}, v{112+2*i}, v{113+2*i}
    v_lshlrev_b32 v{184+2*i}, 16, v{104+2*i}
    v_and_b32 v{185+2*i}, 0xffff0000, v{104+2*i}
    v_lshlrev_b32 v{192+2*i}, 16, v{112+2*i}
    v_and_b32 v{193+2*i}, 0xffff0000, v{112+2*i}""")

INIT = 154
def DF(t): bg.extend(l.strip() for l in t.split("\n") if l.strip())
DF(f"""s_mul_i32 s7, s3, {HS_STR}
s_add_u32 s60, s7, {HS_OFF}
v_and_b32 v92, 7, v1
v_mul_u32_u24 v93, 80, v92
v_add_u32 v93, s15, v93
v_lshrrev_b32 v94, 3, v1
v_lshl_add_u32 v95, v94, 3, v93""")
DF(f"""v_mov_b32 v{INIT}, 0
v_mov_b32 v{INIT+1}, 0
s_lshl_b32 s7, s6, 15
s_add_u32 s96, s58, s7
s_addc_u32 s97, s59, 0
s_mov_b32 s98, 32768
s_mov_b32 s99, 0x20000
s_lshl_b32 s7, s5, 10
s_lshl_b32 s61, s3, 7
s_add_u32 s7, s7, s61
v_lshl_add_u32 v96, v92, 4, s7""")
DF(f"""s_lshr_b32 s7, s3, 2
s_lshl_b32 s7, s7, 5
s_and_b32 s8, s3, 2
s_lshl_b32 s8, s8, 1
s_add_u32 s7, s7, s8
s_and_b32 s8, s3, 1
s_lshl_b32 s8, s8, 4
s_add_u32 s7, s7, s8
s_lshl_b32 s8, s6, 6
s_add_u32 s7, s7, s8
v_lshrrev_b32 v99, 2, v94
v_and_b32 v100, 3, v94
v_lshl_add_u32 v99, v99, 3, v100
v_add_u32 v99, s7, v99
v_mul_u32_u24 v99, 896, v99
v_xor_b32 v100, v92, v94
v_lshl_add_u32 v101, v100, 4, v99
s_mul_i32 s12, s3, 7168""")
DF(f"""s_mov_b32 s10, 0x01000504
s_mov_b32 s11, 0x03020706
s_lshl_b32 s9, s3, 9
s_sub_u32 s9, {U_OFF + 4092 - 256}, s9
v_and_b32 v102, 33, v1
v_lshlrev_b32 v102, 2, v102
v_and_b32 v103, 14, v1
v_lshl_add_u32 v102, v103, 3, v102
v_bfe_u32 v103, v1, 4, 1
v_lshl_add_u32 v102, v103, 3, v102
v_sub_u32 v102, s9, v102""")
DF(f"""v_lshlrev_b32 v99, 12, v94
v_sub_u32 v99, v96, v99
v_mov_b32 v100, {NON}""")
for i in range(4):
    DF(f"v_subrev_u32 v{184+i}, {1024*(i+1)}, v99")
    DF(f"v_cmp_le_i32 vcc, 0, v{184+i}\nv_cndmask_b32 v{188+i}, 0, v100, vcc")
DF(f"""s_and_b32 s14, s3, 3
s_and_b32 s7, s3, 4
s_mul_i32 s7, s7, {G_STR}
s_lshl_b32 s8, s14, 9
s_add_u32 s8, s8, 512
s_cmp_eq_u32 s14, 0
s_cselect_b32 s8, 0, s8
s_cselect_b32 s9, 4, 3
s_add_u32 s7, s7, s8
s_add_u32 s7, s7, {G_OFF}
v_lshlrev_b32 v112, s9, v1
v_add_u32 v112, s7, v112
v_add_u32 v113, {G_STR}, v112
v_add_u32 v114, {2*G_STR}, v112
v_add_u32 v115, {3*G_STR}, v112
s_lshr_b32 s15, s3, 2
s_mul_i32 s7, s15, {K_STR}
s_add_u32 s7, s7, {K_OFF + 480}
s_lshl_b32 s8, 256, s14
s_cmp_eq_u32 s14, 0
s_cselect_b32 s8, 0, s8
s_add_u32 s7, s7, s8
s_max_u32 s9, s14, 1
s_add_u32 s9, s9, 2
v_lshlrev_b32 v116, s9, v1
v_add_u32 v116, s7, v116""")
DF(f"""s_lshr_b32 s61, s3, 1
s_and_b32 s61, s61, 1
v_lshlrev_b32 v4, 3, v3
v_sub_u32 v4, v4, v2
v_add_u32 v4, 2031, v4
v_and_b32 v5, 1, v4
v_and_b32 v4, 0xfffe, v4
v_lshlrev_b32 v4, 1, v4
v_mul_u32_u24 v5, {U_CP}, v5
s_mul_i32 s7, s15, {2*U_CP}
s_add_u32 s7, s7, {U_OFF - 960 + 256}
s_lshl_b32 s61, s61, 8
s_sub_u32 s7, s7, s61
v_add3_u32 v4, v4, v5, s7
v_subrev_u32 v5, 1024, v4
v_subrev_u32 v6, 2048, v4
v_subrev_u32 v7, 3072, v4
s_mul_i32 s7, s15, {K_STR}
s_add_u32 s7, s7, {K_OFF + 448 - 192}
s_sub_u32 s7, s7, s61
v_lshlrev_b32 v123, 5, v2
v_lshl_add_u32 v123, v3, 4, v123
v_add_u32 v123, s7, v123""")
DF(f"""v_mul_u32_u24 v192, 80, v92
v_add_u32 v192, s60, v192
v_lshl_add_u32 v193, v94, 3, v192
v_mul_u32_u24 v194, 144, v92
v_lshl_add_u32 v194, v94, 4, v194
v_add_u32 v194, s60, v194
v_lshrrev_b32 v195, 2, v2
v_mul_u32_u24 v195, 144, v195
v_lshl_add_u32 v195, v3, 5, v195
v_and_b32 v196, 3, v1
v_lshl_add_u32 v195, v196, 3, v195
v_add_u32 v195, s60, v195
s_lshl_b32 s7, s6, 3
s_add_u32 s7, s7, s3
s_lshl_b32 s7, s7, 8
s_mul_i32 s61, s5, {4*28*1024}
s_add_u32 s7, s7, s61
s_add_u32 s7, s7, {WS_H}
v_mul_u32_u24 v196, {28*1024}, v3
v_lshl_add_u32 v196, v2, 4, v196
v_add_u32 v196, s7, v196
v_add_u32 v197, {14*1024}, v196""")
A(f"""v_and_b32 v4, 7, v2
v_xor_b32 v5, v4, v3
v_lshlrev_b32 v5, 4, v5
v_lshl_add_u32 v5, v4, 7, v5
v_lshrrev_b32 v4, 3, v2
v_lshl_add_u32 v6, v4, 10, v5
v_add_u32 v6, s15, v6
v_xor_b32 v7, 64, v6
s_movk_i32 s7, 7168
v_mad_u32_u24 v152, v4, s7, v5
v_xor_b32 v153, 64, v152
v_lshl_add_u32 v8, v1, 4, s15
v_mov_b32 v10, {CNT}
v_mov_b32 v11, 1
s_waitcnt vmcnt(4)
s_cmp_lt_u32 s3, 4
s_cbranch_scc1 LA2
s_waitcnt vmcnt(0)
s_branch LA0
LA2:
s_mov_b64 exec, 1
ds_add_u32 v10, v11 offset:4
s_mov_b64 exec, -1
LA0:""")
stamp()
for ks in range(8): A(f"ds_read_b128 {Q(200+4*ks)}, v{6+ks%2} offset:{2048*(ks//2)}")
for i in range(3):
    A(f"""s_lshl_b32 s7, s61, 11
    v_add_u32 v9, s7, v8
    s_add_u32 s61, s61, 1
    s_cmp_eq_u32 s61, 3
    s_cselect_b32 s61, 0, s61
    ds_write_b128 v9, {Q(232+8*i)}
    ds_write_b128 v9, {Q(236+8*i)} offset:1024""")
for ks in range(8, 14): A(f"ds_read_b128 {Q(200+4*ks)}, v{6+ks%2} offset:{2048*(ks//2-4)}")
A(f"""LA1:
ds_read_b32 v11, v10 offset:4
s_waitcnt lgkmcnt(0)
v_readfirstlane_b32 s7, v11
s_cmp_lt_u32 s7, 4
s_cbranch_scc1 LA1""")
stamp()
ACC = 124
order = [(ks, q) for ks in range(14) for q in range(4)]
def rd1(n):
    ks, q = order[n]; A(f"ds_read_b128 {Q(28+4*(n%16))}, v{152+ks%2} offset:{q*14336+(ks//2)*1024}")
for n in range(12): rd1(n)
iss_u()
for n in range(56):
    ks, q = order[n]
    if n % 4 == 0:
        left = min(n + 12, 56) - (n + 4)
        A(f"s_waitcnt lgkmcnt({left})")
    A(f"v_mfma_f32_16x16x32_bf16 {Q(ACC+4*q)}, {Q(28+4*(n%16))}, {Q(200+4*ks)}, {'0' if ks == 0 else Q(ACC+4*q)}")
    if n + 12 < 56: rd1(n + 12)
    bgemit(3)
assert not bg
stamp()
Z = 156
for r in range(8):
    A(f"v_mov_b32 v{Z+2*r}, v{ACC+r}"); A(f"v_mov_b32 v{Z+2*r+1}, v{ACC+r+8}")
for r in range(8):
    A(f"v_mov_b32_dpp v{Z+2*r}, v{ACC+r+8} row_ror:8 row_mask:0xf bank_mask:0xc")
    A(f"v_mov_b32_dpp v{Z+2*r+1}, v{ACC+r} row_ror:8 row_mask:0xf bank_mask:0x3")
cur = Z
for r in range(1, 8):
    d = 10 + 2 * (r % 2); cfma(d, cur, LAM, Z + 2 * r, d); cur = d
A(f"ds_write_b64 v95, {P(cur)}")
for i in range(4): A(f"ds_read_b128 {Q(16+4*i)}, v93 offset:{16*i}")
A("v_mov_b32 v253, v101\nv_mov_b32 v152, v123\ns_waitcnt lgkmcnt(0)")
cur = 16
for s in range(1, 8):
    A(f"v_cmp_eq_u32 vcc, {s}, v94")
    d = 10 + 2 * (s % 2); cfma(d, cur, L8, 16 + 2 * s, d)
    A(f"v_cndmask_b32 v{INIT}, v{INIT}, v{cur}, vcc"); A(f"v_cndmask_b32 v{INIT+1}, v{INIT+1}, v{cur+1}, vcc")
    cur = d
A(f"""v_mov_b32 v16, v{cur}
v_mov_b32 v17, {NON}
v_mov_b32 v18, v{cur+1}
v_mov_b32 v19, {NON}
s_mov_b64 exec, 0xff
buffer_store_dwordx4 {Q(16)}, v96, s[96:99], 0 offen sc1
s_mov_b64 exec, -1""")
def cdma():
    return [f"s_add_u32 m0, s12, {57344*comp + (1024-128)*k}\nglobal_load_lds_dwordx4 v253, {(BCre, BCim)[comp]} offset:{128*k}" for comp in range(2) for k in range(7)]
stamp()
T = 200
AGL = "\n".join(f"buffer_load_dwordx4 {Q(T+4+4*i)}, v{184+i}, s[96:99], 0 offen sc1" for i in range(4))
def iss_a(): A(AGL)
A("s_setprio 3\ns_barrier")
for i in range(4): A(f"ds_read2_b64 {Q(12+4*i)}, v{112+i} offset0:0 offset1:1")
cd = cdma()
stamp()
tagged(iss_u, chk([141, 143, 145, 147], 8), waitn=1)
for hf in range(2):
    a, b = 140 + 4 * hf, 142 + 4 * hf
    o = 256 - 256 * hf
    A(f"""v_perm_b32 v{30+2*hf}, v{b}, v{a}, s10
    v_perm_b32 v{31+2*hf}, v{b}, v{a}, s11
    ds_write_b32 v102, v{30+2*hf} offset:{o}
    ds_write_b32 v102, v{31+2*hf} offset:{o + 2*U_CP}
    ds_write_b16 v102, v{b} offset:{o + U_CP - 2}
    ds_write_b16 v102, v{a} offset:{o + U_CP}
    ds_write_b16_d16_hi v102, v{b} offset:{o + 3*U_CP - 2}
    ds_write_b16_d16_hi v102, v{a} offset:{o + 3*U_CP}""")
A(f"""s_waitcnt lgkmcnt(12)
v_pk_add_f32 {P(12)}, {P(12)}, {P(16)}
v_pk_add_f32 {P(14)}, {P(14)}, {P(18)}
v_pk_add_f32 {P(20)}, {P(20)}, {P(24)}
v_pk_add_f32 {P(22)}, {P(22)}, {P(26)}
v_pk_add_f32 {P(12)}, {P(12)}, {P(20)}
v_pk_add_f32 {P(14)}, {P(14)}, {P(22)}
v_cvt_pk_bf16_f32 v16, v12, v12
v_cvt_pk_bf16_f32 v18, v12, v13
v_cvt_pk_bf16_f32 v19, v13, v13
v_cvt_pk_bf16_f32 v22, v14, v14
s_cmp_eq_u32 s14, 0
s_cbranch_scc1 LX0
s_cmp_eq_u32 s14, 1
s_cbranch_scc1 LX1
s_cmp_eq_u32 s14, 2
s_cbranch_scc1 LX2
v_mov_b32 v17, v16
v_mov_b32 v20, v19
v_mov_b32 v21, v19
v_mov_b32 v23, v22
ds_write_b128 v116, {Q(16)}
ds_write_b128 v116, {Q(20)} offset:16
s_branch LX3
LX0:
v_cvt_pk_bf16_f32 v19, v14, v15
ds_write_b64 v116, {P(18)}
s_branch LX3
LX1:
v_cvt_pk_bf16_f32 v17, v13, v14
ds_write_b64 v116, {P(16)}
s_branch LX3
LX2:
v_mov_b32 v17, v18
v_mov_b32 v18, v19
v_mov_b32 v19, v22
ds_write_b128 v116, {Q(16)}
LX3:
v_mov_b32 v20, 0
v_mov_b32 v21, 0
v_mov_b32 v22, 0
v_mov_b32 v23, 0
s_cmp_lg_u32 s3, 0
s_cbranch_scc1 LNZ
v_lshrrev_b32 v16, 5, v1
v_mul_u32_u24 v16, {K_STR}, v16
v_and_b32 v17, 31, v1
v_min_u32 v17, 29, v17
v_lshl_add_u32 v16, v17, 4, v16
v_add_u32 v16, {K_OFF}, v16
v_lshrrev_b32 v17, 1, v1
v_and_b32 v17, 3, v17
v_mul_u32_u24 v17, {U_CP}, v17
v_and_b32 v18, 1, v1
v_lshl_add_u32 v18, v18, 4, v17
v_add_u32 v18, {U_OFF + 4096}, v18
ds_write_b128 v16, {Q(20)}
ds_write_b128 v18, {Q(20)}
v_mov_b32 v19, {U_OFF + U_CP + 4094}
ds_write_b16 v19, v20
ds_write_b16 v19, v20 offset:{2*U_CP}
LNZ:""")
CA = 136; FB = (8, 72)
SETS = ((7, 6, 1, 0), (5, 4, 3, 2))
def conv_reads(st, k):
    fb = FB[k % 2]; nfr = max(SETS[st]) + 1; L = []
    for i in range(nfr):
        o = (704 - 64 * k - 512 * (i % 2)) // 4
        L.append(f"ds_read2_b32 {P(fb+4*i)}, v{4+i//2} offset0:{o} offset1:{o+1}")
        L.append(f"ds_read2_b32 {P(fb+4*i+2)}, v{4+i//2} offset0:{o+2} offset1:{o+3}")
        L.append(f"ds_read_b128 {Q(fb+32+4*i)}, v152 offset:{512*i + 192 - 64*k}")
    return L
def conv_mfmas(st, k):
    fb = FB[k % 2]; L = []
    for i in range(8):
        for ti, j in enumerate(SETS[st]):
            if i <= j:
                L.append(f"v_mfma_f32_16x16x32_bf16 {Q(CA+4*ti)}, {Q(fb+4*i)}, {Q(fb+32+4*(j-i))}, {'0' if (k == 0 and i == 0) else Q(CA+4*ti)}")
    return L
ncv = [0]
def conv_step(k, first=False, extra=()):
    n = ncv[0]; ncv[0] += 1
    A(f"s_bitcmp1_b32 s3, 0\ns_cbranch_scc1 LCB{n}")
    for st in range(2):
        if st == 1: A(f"LCB{n}:")
        if first:
            for r in conv_reads(st, k): A(r)
        A("s_waitcnt lgkmcnt(0)")
        rd = conv_reads(st, k + 1) if k < 3 else []
        ex = list(extra)
        for mi_, m in enumerate(conv_mfmas(st, k)):
            A(m)
            if ex and mi_ % 2 == 1: A(ex.pop(0))
            for r in rd[:2]: A(r)
            rd = rd[2:]
        assert not ex
        if st == 0: A(f"s_branch LCE{n}")
    A.flush()
    A(f"LCE{n}:")
def conv_first():
    A(f"s_bitcmp1_b32 s3, 0\ns_cbranch_scc1 LCF0")
    for r in conv_reads(0, 0)[18:]: A(r)
    A("LCF0:")
    for r in conv_reads(1, 0): A(r)
T = 200
A("s_waitcnt lgkmcnt(0)\ns_barrier")
stamp("e")
conv_step(0, first=True, extra=["", AGL] + cd[:7])
stamp("e")
tagged(iss_a, chk([T + 5 + 2 * i for i in range(8)], T + 2, [188 + i // 2 for i in range(8)]), waitn=7)
stamp()
for i in range(4): A(f"v_mov_b32 v{T+5+4*i}, v{T+6+4*i}")
cfma(T + 20, T + 16, L64, T + 12, T + 20); cfma(T + 22, T + 20, L64, T + 8, T + 22); cfma(T + 20, T + 22, L64, T + 4, T + 20)
cmul(T + 16, T + 20, L256S)
A(f"""ds_write_b64 v193, {P(T+16)}""")
for i in range(4): A(f"ds_read_b128 {Q(T+20+4*i)}, v192 offset:{16*i}")
A(f"""s_waitcnt lgkmcnt(0)""")
for a, b in ((20, 22), (24, 26), (28, 30), (32, 34), (20, 24), (28, 32), (20, 28)):
    A(f"v_pk_add_f32 {P(T+a)}, {P(T+a)}, {P(T+b)}")
cfma(T + 18, T + 20, L8S, INIT, T + 18)
cur = T + 18
for r in range(8):
    cfma(Z + 2 * r, cur, LAM, Z + 2 * r, Z + 2 * r); cur = Z + 2 * r
    cmul(T + 20 + 2 * r, cur, CO2)
for r in range(4):
    A(f"v_cvt_pk_bf16_f32 v{T+36+r}, v{T+20+4*r}, v{T+22+4*r}")
    A(f"v_cvt_pk_bf16_f32 v{T+40+r}, -v{T+21+4*r}, -v{T+23+4*r}")
A(f"ds_write_b128 v194, {Q(T+36)}\nds_write_b128 v194, {Q(T+40)} offset:1152")
for comp in range(2):
    for hf in range(2):
        A(f"ds_read_b64_tr_b16 {P(T+44+4*comp+2*hf)}, v195 offset:{1152*comp + 576*hf}")
A(f"""s_waitcnt lgkmcnt(0)
global_store_dwordx4 v196, {Q(T+44)}, {ws} sc1
global_store_dwordx4 v197, {Q(T+48)}, {ws} sc1""")
stamp()
conv_step(1)
A(f"""v_mov_b32 v{T}, {CNT}
v_mov_b32 v{T+1}, 1
s_lshl_b32 s7, s4, 7
s_add_u32 s7, s7, {WS_F}
v_lshl_add_u32 v{T+2}, v1, 2, s7
v_mov_b32 v{T+3}, {NON}
s_mov_b64 exec, 1
s_waitcnt vmcnt(0)
ds_add_rtn_u32 v{T+1}, v{T}, v{T+1}
s_waitcnt lgkmcnt(0)
v_readfirstlane_b32 s7, v{T+1}
s_mov_b64 exec, -1
s_cmp_lg_u32 s7, 7
s_cbranch_scc1 LNF2
s_mov_b32 exec_hi, 0
global_store_dword v{T+2}, v{T+3}, {ws} sc1
s_mov_b64 exec, -1
LNF2:
s_setprio 0
s_mul_i32 s7, s5, {7*128}
s_add_u32 s7, s7, {WS_F}
v_min_u32 v156, 6, v1
v_lshl_add_u32 v156, v156, 7, s7
s_lshl_b32 s7, s5, 2
s_add_u32 s7, s7, s100
s_mul_i32 s7, s7, 28
s_mul_i32 s61, s101, 14
s_add_u32 s7, s7, s61
s_lshl_b32 s7, s7, 10
s_add_u32 s7, s7, {WS_H + 4096}
v_lshl_add_u32 v160, v1, 4, s7
v_add_u32 v161, 8192, v160""")
stamp()
A(f"""s_lshl_b32 s7, s35, 1
s_movk_i32 s9, 896
v_lshl_add_u32 v162, v3, 4, s7
v_add_u32 v163, s34, v2
v_mad_u32_u24 v163, v163, s9, v162
global_load_dwordx4 {Q(184)}, v163, {u_}
global_load_dwordx4 {Q(188)}, v162, {ADs}
global_load_dwordx4 {Q(192)}, v162, {BDs}""")
conv_step(2, extra=cd[7:])
def iss_f(): A(f"global_load_dword v157, v156, {ws} sc1")
conv_step(3)
stamp()
def hld(a, b):
    for k in range(a, b): A(f"global_load_dwordx4 {Q(200+4*k)}, v{160 + k//8}, {ws} offset:{1024*(k%8) - 4096} sc1")
A(f"""s_lshr_b32 s7, s3, 1
s_mul_i32 s7, s7, {PS}
s_add_u32 s7, s7, {PART}
v_mul_u32_u24 v4, 320, v3
v_lshl_add_u32 v4, v2, 4, v4
v_add_u32 v4, s7, v4
s_mul_i32 s32, s3, {4*PS}
s_add_u32 s32, s32, {PART}
v_lshrrev_b32 v5, 3, v1
v_lshlrev_b32 v5, 4, v5
v_bfe_u32 v6, v1, 1, 2
v_mul_u32_u24 v6, 320, v6
v_and_b32 v7, 1, v1
v_lshl_add_u32 v5, v7, 3, v5
v_add3_u32 v5, v5, v6, s32
v_xor_b32 v152, 64, v153
s_barrier
s_bitcmp1_b32 s3, 0
s_cbranch_scc1 LPW1""")
for st in range(2):
    if st == 1: A("LPW1:")
    for ti, j in enumerate(SETS[st]): A(f"ds_write_b128 v4, {Q(CA+4*ti)} offset:{4*PS*j}")
    if st == 0: A("s_branch LPW2")
A(f"""LPW2:
s_lshl_b32 s7, s4, 14
s_lshl_b32 s61, s3, 11
s_add_u32 s7, s7, s61
s_add_u32 s7, s7, {WS_Y}
v_lshl_add_u32 v6, v1, 4, s7
s_mul_i32 s7, s101, 57344
v_add_u32 v152, s7, v152
v_xor_b32 v153, 64, v152
s_waitcnt vmcnt(0) lgkmcnt(0)""")
iss_f()
A("s_barrier")
stamp()
for hf in range(2):
    for i in range(4): A(f"ds_read_b64 {P(8+8*hf+2*i)}, v5 offset:{PS*i + 128*hf}")
A(f"v_mov_b32 v25, {NON}\nv_mov_b32 v27, {NON}\nv_mov_b32 v29, {NON}\nv_mov_b32 v31, {NON}\ns_waitcnt lgkmcnt(0)")
for hf in range(2):
    b = 8 + 8 * hf
    A(f"""v_pk_add_f32 {P(b)}, {P(b)}, {P(b+2)}
    v_pk_add_f32 {P(b+4)}, {P(b+4)}, {P(b+6)}
    v_cvt_pk_bf16_f32 v{24+4*hf}, v{b}, v{b+4}
    v_cvt_pk_bf16_f32 v{26+4*hf}, v{b+1}, v{b+5}
    global_store_dwordx4 v6, {Q(24+4*hf)}, {ws} offset:{1024*hf} sc1""")
def rd2(n):
    ks, q = n // 4, n % 4
    A(f"ds_read_b128 {Q(32+4*(n%16))}, v{152+ks%2} offset:{q*14336+(ks//2)*1024}")
for n in range(12): rd2(n)
epi_pre()
tagged(iss_f, chk([157], 158), waitn=2)
stamp()
HA = int(os.environ.get("HA", 5))
hld(0, HA)
DF(f"""s_lshr_b32 s7, s35, 1
s_lshl_b32 s7, s7, 14
s_add_u32 s7, s7, {WS_Y}
v_add_u32 v8, s34, v2
v_lshlrev_b32 v6, 3, v8
v_add_u32 v7, {WS_G}, v6
v_lshl_add_u32 v6, v3, 16, v6
v_add_u32 v6, s7, v6
v_add_u32 v10, 16384, v6
v_add_u32 v11, 32768, v6
v_add_u32 v12, 49152, v6
v_lshl_add_u32 v5, v1, 4, s32
s_xor_b32 s7, s3, 4
s_mul_i32 s7, s7, {4*PS}
s_add_u32 s7, s7, {PART}
v_lshl_add_u32 v4, v1, 4, s7
v_mul_u32_u24 v96, 144, v2
v_lshl_add_u32 v96, v3, 5, v96
v_add_u32 v96, s32, v96
v_lshrrev_b32 v97, 3, v1
v_and_b32 v99, 7, v1
v_mul_u32_u24 v100, 144, v97
v_lshl_add_u32 v100, v99, 4, v100
v_add_u32 v100, s32, v100
v_add_u32 v98, s34, v97
v_mul_u32_u24 v98, 1792, v98
v_lshl_add_u32 v98, v99, 4, v98
s_lshl_b32 s7, s35, 2
v_add_u32 v98, s7, v98
v_add_u32 v99, {8*1792}, v98""")
bgemit(30)
def iss_y():
    A(f"global_load_dwordx2 {P(14)}, v7, {ws} sc1")
    for i, r in enumerate((6, 10, 11, 12)): A(f"global_load_dwordx2 {P(16+2*i)}, v{r}, {ws} sc1")
YK = 14 - HA
for n in range(56):
    ks, q = n // 4, n % 4
    if q == 0:
        left = min(n + 12, 56) - (n + 4)
        A(f"s_waitcnt vmcnt({min(ks + HA, 14) - ks - 1 + (5 if ks > YK else 0)}) lgkmcnt({left})")
        if ks + HA < 14: hld(ks + HA, ks + HA + 1)
        if ks == YK: iss_y()
    A(f"v_mfma_f32_16x16x32_bf16 {Q(ACC+4*q)}, {Q(32+4*(n%16))}, {Q(200+4*ks)}, {'0' if ks == 0 else Q(ACC+4*q)}")
    if n + 12 < 56: rd2(n + 12)
stamp()
A(f"""s_cmp_eq_u32 s101, 0
s_cbranch_scc1 LE0
ds_write_b128 v5, {Q(ACC)}
ds_write_b128 v5, {Q(ACC+4)} offset:1024""")
for i in range(4): A(f"v_pk_add_f32 {P(192+2*i)}, {P(ACC+8+2*i)}, {P(192+2*i)}")
A(f"""s_branch LE1
LE0:
ds_write_b128 v5, {Q(ACC+8)}
ds_write_b128 v5, {Q(ACC+12)} offset:1024""")
for i in range(4): A(f"v_pk_add_f32 {P(192+2*i)}, {P(ACC+2*i)}, {P(192+2*i)}")
A.flush()
A(f"LE1:\ns_waitcnt lgkmcnt(0)\ns_barrier\nds_read_b128 {Q(40)}, v4\nds_read_b128 {Q(44)}, v4 offset:1024")
stamp("e")
tagged(iss_y, chk([15, 17, 19, 21, 23], 24))
stamp("e")
for i in range(4):
    A(f"v_lshlrev_b32 v{28+2*i}, 16, v{16+2*i}\nv_and_b32 v{29+2*i}, 0xffff0000, v{16+2*i}")
A(f"v_sub_f32 v15, 1.0, v14")
for i in range(4): A(f"v_pk_add_f32 {P(28+2*i)}, {P(28+2*i)}, {P(184+2*i)}")
A(f"v_cvt_pk_bf16_f32 v15, v15, v15")
for i in range(4): A(f"v_cvt_pk_bf16_f32 v{16+i}, v{28+2*i}, v{29+2*i}")
A(f"v_lshlrev_b32 v15, 16, v15")
for i in range(4):
    A(f"v_lshlrev_b32 v{28+2*i}, 16, v{16+i}\nv_and_b32 v{29+2*i}, 0xffff0000, v{16+i}")
for i in range(4): A(f"v_pk_mul_f32 {P(28+2*i)}, {P(28+2*i)}, {P(14)} op_sel:[0,0] op_sel_hi:[1,0]")
for i in range(4): A(f"v_cvt_pk_bf16_f32 v{16+i}, v{28+2*i}, v{29+2*i}")
A("s_waitcnt lgkmcnt(0)")
for i in range(4): A(f"v_pk_add_f32 {P(40+2*i)}, {P(40+2*i)}, {P(192+2*i)}")
for i in range(4):
    A(f"v_lshlrev_b32 v{28+2*i}, 16, v{16+i}\nv_and_b32 v{29+2*i}, 0xffff0000, v{16+i}")
for i in range(4): A(f"v_pk_fma_f32 {P(28+2*i)}, {P(40+2*i)}, {P(14)}, {P(28+2*i)} op_sel:[0,1,0] op_sel_hi:[1,1,1]")
A(f"""ds_write_b128 v96, {Q(28)} offset:2048
ds_write_b128 v96, {Q(32)} offset:2064
ds_read_b128 {Q(36)}, v100 offset:2048
ds_read_b128 {Q(40)}, v100 offset:{2048 + 8*144}
s_waitcnt lgkmcnt(1)
global_store_dwordx4 v98, {Q(36)}, {out_} sc0 sc1
s_waitcnt lgkmcnt(0)
global_store_dwordx4 v99, {Q(40)}, {out_} sc0 sc1""")
if PROF:
    stamp("e"); A("s_waitcnt vmcnt(0)"); stamp()
    A(f"""s_memrealtime s[60:61]
    s_waitcnt lgkmcnt(0)
    s_lshl_b32 s7, s4, 3
    s_add_u32 s7, s7, s3
    s_lshl_b32 s7, s7, 7
    s_add_u32 s7, s7, {WS_P}
    v_mov_b32 v4, s7
    s_mov_b64 exec, 1""")
    for i, r in enumerate([62, 60] + [64 + 2 * k for k in range(nstamp[0])]):
        A(f"v_mov_b32 v5, s{r}\nglobal_store_dword v4, v5, {ws} offset:{4*i}")
A("s_endpgm")
A(f"""LGATE:
s_getpc_b64 s[14:15]
LPC:
s_sub_u32 s14, s14, LPC-{NAME}_kernel
s_subb_u32 s15, s15, 0
s_lshr_b32 s7, s2, 3
s_lshl_b32 s7, s7, 13
v_lshl_add_u32 v5, v0, 4, s7
v_min_u32 v5, LEND-{NAME}_kernel-16, v5
global_load_dwordx4 {Q(76)}, v5, s[14:15]
s_and_b32 s7, s2, 7
s_lshl_b32 s7, s7, 2
s_lshr_b32 s8, s2, 3
s_add_u32 s5, s7, s8
s_add_u32 s4, s5, 224
s_lshl_b32 s7, s5, 6
s_lshl_b32 s8, s3, 3
s_add_u32 s9, s7, s8
s_mul_i32 s7, s9, 896
v_lshlrev_b32 v4, 4, v1
v_add_u32 v5, s7, v4
v_add_u32 v6, 3584, v5""")
for i in range(16): A(f"v_mov_b32 v{60+i}, 0")
A(f"""s_waitcnt lgkmcnt(0)
s_load_dword s11, {ws}, s12
s_lshr_b32 s7, s2, 3
s_lshl_b32 s7, s7, 3
s_add_u32 s7, s7, s3
s_mul_i32 s7, s7, 12544
v_add_u32 v7, s7, v4""")
A(f"""s_mov_b32 exec_lo, -1
s_mov_b32 exec_hi, 0xffffff
global_load_dwordx4 {Q(8)}, v4, {gw}""")
for i in range(8): A(f"global_load_dwordx4 {Q(12+4*i)}, v{5+i//4}, {u_} offset:{896*(i%4)}")
A("s_waitcnt vmcnt(0) lgkmcnt(0)")
A(f"s_add_u32 {NON}, s11, 0x9E3779B9")
for k in range(4): A(f"v_lshlrev_b32 v{44+2*k}, 16, v{8+k}\nv_and_b32 v{45+2*k}, 0xffff0000, v{8+k}")
for i in range(8):
    for k in range(4): A(f"v_lshlrev_b32 v{52+2*k}, 16, v{12+4*i+k}\nv_and_b32 v{53+2*k}, 0xffff0000, v{12+4*i+k}")
    for k in range(4): A(f"v_pk_mul_f32 {P(52+2*k)}, {P(52+2*k)}, {P(44+2*k)}")
    for k in range(4): A(f"v_cvt_pk_bf16_f32 v{8+k}, v{52+2*k}, v{53+2*k}")
    for k in range(4): A(f"v_lshlrev_b32 v{52+2*k}, 16, v{8+k}\nv_and_b32 v{53+2*k}, 0xffff0000, v{8+k}")
    for k in range(4): A(f"v_pk_add_f32 {P(60+2*i)}, {P(60+2*i)}, {P(52+2*k)}")
A("s_mov_b64 exec, -1")
for i in range(8): A(f"v_add_f32 v{60+2*i}, v{60+2*i}, v{61+2*i}")
for sh in ("row_shr:1 row_mask:0xf", "row_shr:2 row_mask:0xf", "row_shr:4 row_mask:0xf", "row_shr:8 row_mask:0xf", "row_bcast:15 row_mask:0xa", "row_bcast:31 row_mask:0xc"):
    for i in range(8): A(f"v_add_f32_dpp v{60+2*i}, v{60+2*i}, v{60+2*i} {sh} bank_mask:0xf")
for i in range(8): A(f"v_readlane_b32 s{64+i}, v{60+2*i}, 63")
for i in range(8): A(f"v_writelane_b32 v8, s{64+i}, {i}")
A(f"""v_cvt_pk_bf16_f32 v8, v8, v8
v_lshlrev_b32 v8, 16, v8
v_mul_f32 v8, {(LOG2E | 0x80000000):#x}, v8
v_exp_f32 v8, v8
v_add_f32 v8, 1.0, v8
v_rcp_f32 v8, v8
s_lshl_b32 s7, s9, 3
s_add_u32 s7, s7, {WS_G}
v_cvt_pk_bf16_f32 v8, v8, v8
v_lshlrev_b32 v8, 16, v8
v_mov_b32 v9, {NON}
v_lshl_add_u32 v10, v1, 3, s7
s_mov_b64 exec, 0xff
global_store_dwordx2 v10, {P(8)}, {ws} sc1
s_mov_b64 exec, -1""")
for k in range(13):
    if k == 12: A("s_mov_b64 exec, 0xffff")
    if k and k % 4 == 0: A("v_add_u32 v7, 4096, v7")
    A(f"global_load_dwordx4 {Q(140+8*k)}, v7, {BCre} offset:{1024*(k%4)}\nglobal_load_dwordx4 {Q(144+8*k)}, v7, {BCim} offset:{1024*(k%4)}")
A(f"""s_mov_b64 exec, -1
s_cmp_lg_u32 s2, 0
s_cbranch_scc1 LEND
v_min_u32 v4, 479, v0
v_lshlrev_b32 v5, 7, v4
v_add_u32 v5, {WS_F}, v5
v_lshlrev_b32 v6, 6, v4
v_add_u32 v6, {WS_G + 4 - 224*64}, v6
v_cmp_gt_u32 vcc, 224, v4
v_cndmask_b32 v5, v6, v5, vcc""")
def iss_e(): A(f"s_sleep 32\nglobal_load_dword v8, v5, {ws} sc1")
iss_e()
tagged(iss_e, chk([8], 12))
A(f"""s_barrier
s_cmp_lg_u32 s3, 0
s_cbranch_scc1 LEND
v_mov_b32 v4, {WS_E}
s_mov_b64 exec, 1
global_store_dword v4, v9, {ws} sc1""")
A("LEND:\ns_endpgm")
hdr = open("cdna_kernels/%s.s.ref" % NAME).read().split("; Override launch")[0]
print(hdr + f"""; @launch grid=(256,1,1) block=(512,1,1) lds=163840
.amdgcn_target "amdgcn-amd-amdhsa--gfx950"
.text
.globl {NAME}_kernel
.p2align 8
.type {NAME}_kernel,@function
{NAME}_kernel:
""" + A.text() + f""".section .rodata,"a"
.p2align 6
.amdhsa_kernel {NAME}_kernel
  .amdhsa_next_free_vgpr 256
  .amdhsa_next_free_sgpr 102
  .amdhsa_accum_offset 256
  .amdhsa_group_segment_fixed_size 0
  .amdhsa_kernarg_size 176
  .amdhsa_user_sgpr_count 2
  .amdhsa_user_sgpr_kernarg_segment_ptr 1
  .amdhsa_system_sgpr_workgroup_id_x 1
.end_amdhsa_kernel""")
print("nops inserted:", A.nops, "stamps:", nstamp[0], file=sys.stderr)
```
